```python
import torch

def _softmax(x, axis=-1):
    return torch.softmax(x, dim=axis)
def _gelu(x):
    return torch.nn.functional.gelu(x, approximate="tanh")
def _silu(x):
    return torch.nn.functional.silu(x)
def _sigmoid(x):
    return torch.sigmoid(x)
def _layernorm(x, axis=-1, eps=1e-5):
    m = x.mean(dim=axis, keepdim=True)
    v = x.var(dim=axis, keepdim=True, unbiased=False)
    return (x - m) / torch.sqrt(v + eps)
def _scatter_add(tgt, idx, src, axis=0):
    return tgt.clone().index_add_(axis, idx, src)
def _segment_sum(src, seg, n):
    out = torch.zeros((n,) + src.shape[1:], dtype=src.dtype)
    return out.index_add_(0, seg, src)
def _pad(x, pw):
    flat = tuple(v for pair in reversed(pw) for v in pair)
    return torch.nn.functional.pad(x, flat)

kernel_name = 'recurrent_scan__sliding_block_cached__glu_gated_geglu__prompt'

def setup_inputs():

    _w = (lambda a: (lambda t: t.to(torch.bfloat16) if t.is_floating_point() else t)(torch.as_tensor(a)))
    def _A_setup():
        B, Sq, D = 1, 2048, 640
        Hq, Hkv, Sk, Dh = 32, 32, 2048, 192
        assert Hq % Hkv == 0, (Hq, Hkv)
        return {
            "x": _w((lambda *s: torch.randn(*s, dtype=torch.bfloat16) * 0.05)(B, Sq, D)),
            "k_cache": _w((lambda *s: torch.randn(*s, dtype=torch.bfloat16) * 3.2)(B, Hkv, Sk, Dh)),
            "v_cache": _w((lambda *s: torch.randn(*s, dtype=torch.bfloat16) * 3.2)(B, Hkv, Sk, Dh)),
            "wq": _w((lambda *s: torch.randn(*s, dtype=torch.bfloat16) * 3.2)(D, Hq * Dh) * (D ** -0.5)),
            "wo": _w((lambda *s: torch.randn(*s, dtype=torch.bfloat16) * 3.2)(Hq * Dh, D) * ((Hq * Dh) ** -0.5)),
        }
    _A_in = _A_setup()

    def _B_setup():
        B, S, Dm, Df = 1, 2048, 640, 1536
        return {
            "x": _w((lambda *s: torch.randn(*s, dtype=torch.bfloat16) * 0.05)(B, S, Dm)),
            "w_gate": _w((lambda *s: torch.randn(*s, dtype=torch.bfloat16) * 0.4)(Dm, Df) * (Dm ** -0.5)),
            "w_up": _w((lambda *s: torch.randn(*s, dtype=torch.bfloat16) * 0.4)(Dm, Df) * (Dm ** -0.5)),
            "w_down": _w((lambda *s: torch.randn(*s, dtype=torch.bfloat16) * 0.4)(Df, Dm) * (Df ** -0.5)),
        }
    _B_in = _B_setup()

    return {
        "A_x": _A_in["x"],
        "A_k_cache": _A_in["k_cache"],
        "A_v_cache": _A_in["v_cache"],
        "A_wq": _A_in["wq"],
        "A_wo": _A_in["wo"],
        "B_x": _B_in["x"],
        "B_w_gate": _B_in["w_gate"],
        "B_w_up": _B_in["w_up"],
        "B_w_down": _B_in["w_down"],
    }

def reference(A_x, A_k_cache, A_v_cache, A_wq, A_wo, B_x, B_w_gate, B_w_up, B_w_down):
    def _A_ref(x, k_cache, v_cache, wq, wo):
        B, Sq, D = x.shape
        Hq, Dh = 32, 192
        Hkv, Sk = k_cache.shape[1], k_cache.shape[2]
        W = min(4096, max(256, Sk // 4))
        rep = Hq // Hkv
        q = (lambda x, *d: x.permute(*d))((x @ wq).reshape(B, Sq, Hq, Dh), 0, 2, 1, 3)
        k = (lambda x, n, axis: torch.repeat_interleave(x, n, dim=axis))(k_cache[:, :, Sk - W:, :], rep, axis=1)
        v = (lambda x, n, axis: torch.repeat_interleave(x, n, dim=axis))(v_cache[:, :, Sk - W:, :], rep, axis=1)
        scores = torch.einsum("bhqd,bhkd->bhqk", q, k) * (Dh ** -0.5)
        p = _softmax(scores, axis=-1)
        o = torch.einsum("bhqk,bhkd->bhqd", p, v)
        return (lambda x, *d: x.permute(*d))(o, 0, 2, 1, 3).reshape(B, Sq, Hq * Dh) @ wo

    def _B_ref(x, w_gate, w_up, w_down):
        g = torch.einsum("bsd,df->bsf", x, w_gate)
        u = torch.einsum("bsd,df->bsf", x, w_up)
        h = _gelu(g) * u
        return torch.einsum("bsf,fd->bsd", h, w_down)

    x = A_x
    xn = _layernorm(x, axis=-1)
    s = _A_ref(xn, A_k_cache, A_v_cache, A_wq, A_wo)
    g = _silu(_B_ref(xn, B_w_gate, B_w_up, B_w_down))
    return x + s * g
```

```python
import re

_RANGE = re.compile(r'^([vas])\[(\d+):(\d+)\]$')
_SINGLE = re.compile(r'^([vas])(\d+)$')


def v(i, n=1):
    return 'v%d' % i if n == 1 else 'v[%d:%d]' % (i, i + n - 1)


def a(i, n=1):
    return 'a%d' % i if n == 1 else 'a[%d:%d]' % (i, i + n - 1)


def s(i, n=1):
    return 's%d' % i if n == 1 else 's[%d:%d]' % (i, i + n - 1)


def regs(op):
    if not isinstance(op, str):
        return set()
    o = op.strip()
    if o.startswith('-'):
        o = o[1:]
    if o.startswith('abs(') and o.endswith(')'):
        o = o[4:-1]
    if o.startswith('|') and o.endswith('|'):
        o = o[1:-1]
    m = _RANGE.match(o)
    if m:
        return {(m.group(1), i) for i in range(int(m.group(2)), int(m.group(3)) + 1)}
    m = _SINGLE.match(o)
    if m:
        return {(m.group(1), int(m.group(2)))}
    if o == 'vcc':
        return {('vcc', 0)}
    if o == 'exec':
        return {('exec', 0)}
    if o == 'm0':
        return {('m0', 0)}
    if o == 'scc':
        return {('scc', 0)}
    return set()


def fmt(x):
    if isinstance(x, str):
        return x
    if isinstance(x, float):
        import struct
        inl = {0.0: '0', 0.5: '0.5', -0.5: '-0.5', 1.0: '1.0', -1.0: '-1.0', 2.0: '2.0', -2.0: '-2.0', 4.0: '4.0', -4.0: '-4.0'}
        if x in inl:
            return inl[x]
        return '0x%08x' % struct.unpack('<I', struct.pack('<f', x))[0]
    if isinstance(x, int):
        if -16 <= x <= 64:
            return str(x)
        return '0x%x' % (x & 0xffffffff)
    raise ValueError(x)


TRANS = ('v_exp_f32', 'v_log_f32', 'v_rcp_f32', 'v_rsq_f32', 'v_sqrt_f32', 'v_sin_f32', 'v_cos_f32')


class I:
    __slots__ = ('text', 'kind', 'rd', 'wr', 'tag', 'srcc', 'srcab', 'waitjob', 'need_vm', 'need_lgkm', 'need_nop', 'nopn',
                 'store_data', 'wide', 'dpp', 'sid', 'vmn', 'lgn')

    def __init__(self, text, kind, rd=(), wr=(), tag=None):
        self.text = text
        self.kind = kind
        self.rd = set(rd)
        self.wr = set(wr)
        self.tag = tag
        self.srcc = set()
        self.srcab = set()
        self.waitjob = None
        self.need_vm = None
        self.need_lgkm = None
        self.need_nop = 0
        self.nopn = 0
        self.store_data = set()
        self.wide = False
        self.dpp = False
        self.vmn = None
        self.lgn = None

    def __repr__(self):
        return self.text


def _u(*ops):
    r = set()
    for o in ops:
        r |= regs(o)
    return r


def valu(op, dst, *srcs, mods='', rmw=False, extra_wr=(), extra_rd=()):
    kind = 'trans' if op in TRANS else 'valu'
    rd = _u(*srcs) | _u(*extra_rd)
    if rmw or op in ('v_fmac_f32', 'v_dot2c_f32_bf16'):
        rd |= regs(dst)
    i = I('%s %s%s' % (op, ', '.join([dst] + [fmt(x) for x in srcs]), (' ' + mods) if mods else ''), kind, rd, regs(dst) | _u(*extra_wr))
    if 'dpp' in op or 'row_' in mods or 'quad_perm' in mods:
        i.dpp = True
    return i


def vcmp(op, dst, s0, s1):
    return I('%s %s, %s, %s' % (op, dst, fmt(s0), fmt(s1)), 'valu', _u(s0, s1), regs(dst))


def permlane32_swap(x, y):
    i = I('v_permlane32_swap_b32 %s, %s' % (x, y), 'permlane', _u(x, y), _u(x, y))
    return i


def readfirstlane(sd, vs):
    return I('v_readfirstlane_b32 %s, %s' % (sd, vs), 'readlane', regs(vs), regs(sd))


def mfma(d, A, B, C=None, op='v_mfma_f32_32x32x16_bf16'):
    if C is None:
        C = d
    i = I('%s %s, %s, %s, %s' % (op, d, A, B, fmt(C)), 'mfma', _u(A, B, C), regs(d))
    i.srcc = regs(C)
    i.srcab = _u(A, B)
    return i


def salu(op, dst, *srcs, scc_wr=True, scc_rd=False):
    rd = _u(*srcs)
    wr = regs(dst)
    if op in ('s_mov_b32', 's_mov_b64', 's_movk_i32', 's_mul_i32', 's_cselect_b32', 's_mul_hi_u32'):
        scc_wr = False
    if op in ('s_addc_u32', 's_cselect_b32', 's_subb_u32', 's_cselect_b64'):
        scc_rd = True
    if scc_wr:
        wr = wr | {('scc', 0)}
    if scc_rd:
        rd = rd | {('scc', 0)}
    return I('%s %s' % (op, ', '.join([dst] + [fmt(x) for x in srcs])), 'salu', rd, wr)


def scmp(op, x, y):
    return I('%s %s, %s' % (op, fmt(x), fmt(y)), 'salu', _u(x, y), {('scc', 0)})


def sload(dst, base, off):
    n = len(regs(dst))
    op = {1: 's_load_dword', 2: 's_load_dwordx2', 4: 's_load_dwordx4', 8: 's_load_dwordx8', 16: 's_load_dwordx16'}[n]
    return I('%s %s, %s, 0x%x' % (op, dst, base, off), 'smem', regs(base), regs(dst))


def ds_read(op, dst, addr, off=0):
    assert 0 <= off < 65536, off
    return I('%s %s, %s%s' % (op, dst, addr, (' offset:%d' % off) if off else ''), 'dsr', regs(addr), regs(dst))


def ds_write(op, addr, data, off=0):
    assert 0 <= off < 65536, off
    return I('%s %s, %s%s' % (op, addr, data, (' offset:%d' % off) if off else ''), 'dsw', _u(addr, data), ())


def _n2x(n):
    return {1: 'dword', 2: 'dwordx2', 3: 'dwordx3', 4: 'dwordx4'}[n]


def buf_load(dst, voff, srd, soff=0, off=0, flags='', tag=None):
    assert 0 <= off < 4096, off
    n = len(regs(dst))
    t = 'buffer_load_%s %s, %s, %s, %s offen%s%s' % (_n2x(n), dst, voff, srd, fmt(soff), (' offset:%d' % off) if off else '', (' ' + flags) if flags else '')
    return I(t, 'vld', _u(voff, srd, soff), regs(dst), tag)


def buf_store(data, voff, srd, soff=0, off=0, flags='', tag=None):
    assert 0 <= off < 4096, off
    n = len(regs(data))
    t = 'buffer_store_%s %s, %s, %s, %s offen%s%s' % (_n2x(n), data, voff, srd, fmt(soff), (' offset:%d' % off) if off else '', (' ' + flags) if flags else '')
    i = I(t, 'vst', _u(data, voff, srd, soff), (), tag)
    i.store_data = regs(data)
    i.wide = n >= 3
    return i


def dma(voff, srd, soff=0, off=0, tag=None, flags=''):
    assert 0 <= off < 4096, off
    t = 'buffer_load_dwordx4 %s, %s, %s offen%s%s lds' % (voff, srd, fmt(soff), (' offset:%d' % off) if off else '', (' ' + flags) if flags else '')
    return I(t, 'dma', _u(voff, srd, soff) | {('m0', 0)}, (), tag)


def barrier(waitjob=None):
    i = I('s_barrier', 'bar')
    i.waitjob = waitjob
    return i


def waitjob(job):
    i = I('', 'pseudo')
    i.waitjob = job
    return i


def waitcnt(vm=None, lgkm=None):
    t = 's_waitcnt'
    if vm is not None:
        t += ' vmcnt(%d)' % vm
    if lgkm is not None:
        t += ' lgkmcnt(%d)' % lgkm
    i = I(t, 'wait')
    i.vmn = vm
    i.lgn = lgkm
    return i


def nop(n):
    i = I('s_nop %d' % n, 'nop')
    i.nopn = n
    return i


def raw(text, kind='other', rd=(), wr=()):
    return I(text, kind, _u(*rd), _u(*wr))


def label(name):
    return I(name + ':', 'label')


def comment(txt):
    return I('; ' + txt, 'label')


class Loop:
    def __init__(self, name, count, body):
        self.name = name
        self.count = count
        self.body = body


class Tagger:
    pass


def expand(items, it=0, out=None):
    if out is None:
        out = []
    for x in items:
        if isinstance(x, Loop):
            for k in range(x.count):
                expand(x.body, k, out)
        elif isinstance(x, list):
            expand(x, it, out)
        else:
            out.append((x, it))
    return out


def dyn_tag(tag, it):
    if callable(tag):
        return tag(it)
    return tag


VM_KINDS = ('vld', 'vst', 'dma')
LG_KINDS = ('dsr', 'dsw', 'smem')


def _wait_pass(trace, record):
    vm_ops = []
    lg_ops = []
    vm_done = 0
    lg_done = 0
    last_vm_writer = {}
    last_lg_writer = {}
    last_tag = {}
    used = set()
    smem_pending = False
    for ins, it in trace:
        k = ins.kind
        if k == 'label':
            continue
        touched = ins.rd | ins.wr
        need_v = -1
        for r in touched:
            j = last_vm_writer.get(r)
            if j is not None and j > need_v:
                need_v = j
        if ins.waitjob is not None:
            jobs = dyn_tag(ins.waitjob, it)
            if not isinstance(jobs, list):
                jobs = [jobs]
            for jb in jobs:
                j = last_tag.get(jb)
                assert j is not None, ('waitjob on unknown job', jb)
                need_v = max(need_v, j)
        need_l = -1
        for r in touched:
            j = last_lg_writer.get(r)
            if j is not None and j > need_l:
                need_l = j
        if need_v >= vm_done:
            n = min(len(vm_ops) - need_v - 1, 63)
            if record:
                ins.need_vm = n if ins.need_vm is None else min(ins.need_vm, n)
            else:
                assert ins.need_vm is not None and ins.need_vm <= n, ('missing vm wait', ins.text, ins.need_vm, n)
            used.add((id(ins), 'v'))
        if need_l >= lg_done:
            n = min(len(lg_ops) - need_l - 1, 15)
            if any(o.kind == 'smem' for o in lg_ops[lg_done:]):
                n = 0
            if record:
                ins.need_lgkm = n if ins.need_lgkm is None else min(ins.need_lgkm, n)
            else:
                assert ins.need_lgkm is not None and ins.need_lgkm <= n, ('missing lgkm wait', ins.text, ins.need_lgkm, n)
            used.add((id(ins), 'l'))
        if ins.need_vm is not None:
            vm_done = max(vm_done, len(vm_ops) - ins.need_vm)
        if ins.need_lgkm is not None:
            lg_done = max(lg_done, len(lg_ops) - ins.need_lgkm)
        if k == 'wait':
            if ins.vmn is not None:
                vm_done = max(vm_done, len(vm_ops) - ins.vmn)
            if ins.lgn is not None:
                if ins.lgn == 0 or not any(o.kind == 'smem' for o in lg_ops[lg_done:]):
                    lg_done = max(lg_done, len(lg_ops) - ins.lgn)
        if k in VM_KINDS:
            idx = len(vm_ops)
            vm_ops.append(ins)
            for r in ins.wr:
                last_vm_writer[r] = idx
            if ins.tag is not None:
                last_tag[dyn_tag(ins.tag, it)] = idx
            assert len(vm_ops) - vm_done <= 63 or k == 'vst', ('vmcnt overflow', ins.text)
        elif k in LG_KINDS:
            idx = len(lg_ops)
            lg_ops.append(ins)
            for r in ins.wr:
                last_lg_writer[r] = idx
    return used


def _slots(ins):
    if ins.kind == 'label':
        return 0
    n = 0
    if ins.need_vm is not None or ins.need_lgkm is not None:
        n += 1
    n += ins.need_nop
    if ins.kind == 'pseudo':
        return n
    if ins.kind == 'nop':
        return n + ins.nopn + 1
    return n + 1


def _req(p, c):
    r = 0
    pk, ck = p.kind, c.kind
    valu_like = ('valu', 'trans', 'permlane', 'readlane')
    if pk == 'mfma':
        passes = 8 if '32x32x16' in p.text else 4
        d = p.wr
        if ck == 'mfma':
            if d & c.srcab:
                r = max(r, {8: 12, 4: 8}[passes])
            if d & c.srcc:
                if not (c.srcc == d and p.text.split()[0] == c.text.split()[0]):
                    r = max(r, {8: 10, 4: 6}[passes])
            elif d & c.wr:
                r = max(r, {8: 10, 4: 6}[passes])
        elif ck in valu_like or ck in ('vld', 'vst', 'dma', 'dsr', 'dsw'):
            if d & (c.rd | c.wr):
                r = max(r, {8: 12, 4: 8}[passes])
            if ck in valu_like and (p.srcc & c.wr):
                r = max(r, {8: 7, 4: 3}[passes])
    if pk in valu_like:
        vw = {x for x in p.wr if x[0] in 'va'}
        sw = {x for x in p.wr if x[0] in ('s', 'vcc')}
        if ck == 'mfma' and vw & c.rd:
            r = max(r, 2)
        if pk == 'trans' and ck in valu_like and ck != 'trans' and vw & (c.rd | c.wr):
            r = max(r, 1)
        if pk == 'trans' and ck in ('vst', 'dsw', 'mfma', 'vld', 'dma', 'dsr') and vw & c.rd:
            r = max(r, 2 if ck == 'mfma' else 1)
        if ck == 'permlane' and vw & c.rd:
            r = max(r, 2)
        if ck == 'readlane' and vw & c.rd:
            r = max(r, 1)
        if c.dpp and vw & c.rd:
            r = max(r, 2)
        if sw:
            if ck in VM_KINDS and sw & c.rd:
                r = max(r, 5)
            if ck in valu_like and sw & c.rd:
                r = max(r, 2)
            if ck == 'salu' and sw & c.rd:
                r = max(r, 2)
        if ('exec', 0) in p.wr:
            r = max(r, 5)
    if pk == 'salu' and ('m0', 0) in p.wr and ck == 'dma':
        r = max(r, 1)
    if pk == 'salu' and ('exec', 0) in p.wr and (ck in valu_like or ck == 'mfma'):
        r = max(r, 0)
    if pk == 'vst' and p.wide and (p.store_data & c.wr):
        r = max(r, 2)
    return r


def _nop_pass(trace, record):
    hist = []
    pos = 0
    for ins, it in trace:
        if ins.kind == 'label':
            continue
        own = _slots(ins)
        if ins.kind == 'pseudo':
            pos += own
            continue
        body = (ins.nopn + 1) if ins.kind == 'nop' else 1
        at = pos + own - body
        deficit = 0
        for p, ppos in reversed(hist):
            dist = at - ppos
            if dist >= 20:
                break
            q = _req(p, ins)
            if q > dist:
                deficit = max(deficit, q - dist)
        if deficit:
            assert record, ('hazard', ins.text, deficit)
            ins.need_nop += deficit
            own += deficit
        pos += own
        hist.append((ins, pos))
        if len(hist) > 64:
            hist = hist[-32:]


def finalize(items):
    trace = expand(items)
    _wait_pass(trace, True)
    for _ in range(3):
        used = _wait_pass(trace, False)
        changed = False
        seen = set()
        for ins, _it in trace:
            if id(ins) in seen:
                continue
            seen.add(id(ins))
            if ins.need_vm is not None and (id(ins), 'v') not in used:
                ins.need_vm = None
                changed = True
            if ins.need_lgkm is not None and (id(ins), 'l') not in used:
                ins.need_lgkm = None
                changed = True
        if not changed:
            break
        _wait_pass(trace, True)
    _wait_pass(trace, False)
    _nop_pass(trace, True)
    _nop_pass(trace, True)
    _nop_pass(trace, False)
    return trace


def emit(items, out=None):
    if out is None:
        out = []
    for x in items:
        if isinstance(x, Loop):
            out.append(x.name + ':')
            emit(x.body, out)
        elif isinstance(x, list):
            emit(x, out)
        else:
            if x.need_vm is not None or x.need_lgkm is not None:
                t = '  s_waitcnt'
                if x.need_vm is not None:
                    t += ' vmcnt(%d)' % x.need_vm
                if x.need_lgkm is not None:
                    t += ' lgkmcnt(%d)' % x.need_lgkm
                out.append(t)
            n = x.need_nop
            while n > 0:
                k = min(n, 16)
                out.append('  s_nop %d' % (k - 1))
                n -= k
            if x.kind == 'pseudo':
                continue
            out.append(x.text if x.kind == 'label' else '  ' + x.text)
    return out


def interleave(backbone, fillers):
    import math
    buckets = {}
    for n, (p, ins) in enumerate(fillers):
        buckets.setdefault(int(math.floor(p)), []).append((p, n, ins))
    out = []
    for key in sorted(k for k in buckets if k < 0):
        for p, n, ins in sorted(buckets[key], key=lambda t: (t[0], t[1])):
            out.append(ins)
    for i, b in enumerate(backbone):
        out.append(b)
        for p, n, ins in sorted(buckets.get(i, []), key=lambda t: (t[0], t[1])):
            out.append(ins)
    for key in sorted(k for k in buckets if k >= len(backbone)):
        for p, n, ins in sorted(buckets[key], key=lambda t: (t[0], t[1])):
            out.append(ins)
    return out


def spread(instrs, p0, p1, weights=None):
    if weights is None:
        weights = [2.0 if getattr(i, 'kind', '') == 'trans' else 1.0 for i in instrs]
    tot = float(sum(weights))
    acc = 0.0
    out = []
    for i, w in zip(instrs, weights):
        out.append((p0 + (p1 - p0) * acc / tot, i))
        acc += w
    return out


def stats(trace):
    from collections import Counter
    c = Counter()
    for ins, _ in trace:
        c[ins.kind] += 1
        if ins.need_nop:
            c['auto_nop_slots'] += ins.need_nop
        if ins.need_vm is not None or ins.need_lgkm is not None:
            c['auto_wait'] += 1
    return dict(c)
```

```python
import math
import sys
from asmgen import *

NAME = 'recurrent_scan__sliding_block_cached__glu_gated_geglu__prompt'

XF_OFF = 0
F_OFF = 4 << 20
P_OFF = 40 << 20
WS_BYTES = 268435456
LOG2E = 1.4426950408889634


def srd(base_s, lo, hi, nrec):
    return [salu('s_mov_b32', s(base_s), lo), salu('s_and_b32', s(base_s + 1), hi, 0xffff),
            salu('s_mov_b32', s(base_s + 2), nrec), salu('s_mov_b32', s(base_s + 3), 0x20000)]


def add64(lo, hi, x):
    return [salu('s_add_u32', s(lo), s(lo), x), salu('s_addc_u32', s(hi), s(hi), 0)]


def kernel_text(name, items, nvgpr, accum, extra_tail=''):
    trace = finalize(items)
    lines = emit(items)
    txt = '.globl %s\n.p2align 8\n.type %s,@function\n%s:\n' % (name, name, name)
    txt += '\n'.join(lines) + '\n' + extra_tail
    desc = '''.amdhsa_kernel %s
  .amdhsa_next_free_vgpr %d
  .amdhsa_next_free_sgpr 102
  .amdhsa_accum_offset %d
  .amdhsa_group_segment_fixed_size 0
  .amdhsa_kernarg_size 96
  .amdhsa_user_sgpr_count 2
  .amdhsa_user_sgpr_kernarg_segment_ptr 1
  .amdhsa_system_sgpr_workgroup_id_x 1
.end_amdhsa_kernel
''' % (name, nvgpr, accum)
    sys.stderr.write('%s: %s\n' % (name, stats(trace)))
    return txt, desc


def endpgm():
    return raw('s_endpgm', 'br')


def k1():
    P = []
    P += [scmp('s_cmp_ge_u32', 's2', 256), raw('s_cbranch_scc1 L_k1_end', 'br', rd=['scc'])]
    P += [sload(s(4, 2), 's[0:1]', 0), sload(s(6, 2), 's[0:1]', 88)]
    P += [valu('v_and_b32', 'v1', 15, 'v0'),
          valu('v_lshrrev_b32', 'v2', 4, 'v0'),
          salu('s_lshl_b32', 's3', 's2', 3),
          valu('v_add_u32', 'v2', 's3', 'v2'),
          valu('v_mul_u32_u24', 'v3', 1280, 'v2'),
          valu('v_lshl_add_u32', 'v3', 'v1', 4, 'v3')]
    P += srd(8, 's4', 's5', 2048 * 1280)
    P += srd(12, 's6', 's7', WS_BYTES)
    X = 8
    for n in range(5):
        P.append(buf_load(v(X + 4 * n, 4), 'v3', s(8, 4), 0, 256 * n))
    P += [valu('v_lshrrev_b32', 'v4', 5, 'v2'),
          salu('s_mov_b32', 's16', 40960),
          valu('v_mul_lo_u32', 'v4', 'v4', 's16'),
          valu('v_lshrrev_b32', 'v5', 1, 'v1'),
          valu('v_lshl_add_u32', 'v4', 'v5', 10, 'v4'),
          valu('v_and_b32', 'v5', 31, 'v2'),
          valu('v_lshl_add_u32', 'v4', 'v5', 4, 'v4'),
          valu('v_and_b32', 'v5', 1, 'v1'),
          valu('v_lshl_add_u32', 'v4', 'v5', 9, 'v4')]
    for n in range(5):
        P.append(salu('s_mov_b32', s(20 + n), XF_OFF + 8192 * n))
    Fv = 32
    for r in range(20):
        P.append(valu('v_lshlrev_b32', v(Fv + 2 * r), 16, v(X + r)))
        P.append(valu('v_and_b32', v(Fv + 2 * r + 1), 0xffff0000, v(X + r)))
    for k in range(4):
        P.append(valu('v_add_f32', v(72 + k), v(Fv + k), v(Fv + 4 + k)))
    for r in range(8, 40):
        P.append(valu('v_add_f32', v(72 + r % 4), v(72 + r % 4), v(Fv + r)))
    P += [valu('v_add_f32', 'v72', 'v72', 'v73'), valu('v_add_f32', 'v74', 'v74', 'v75'), valu('v_add_f32', 'v72', 'v72', 'v74')]

    def row_allreduce(reg, tmp):
        out = []
        for sh in (8, 4, 2, 1):
            out.append(valu('v_add_f32_dpp', tmp, reg, reg, mods='row_ror:%d row_mask:0xf bank_mask:0xf' % sh))
            out.append(valu('v_mov_b32', reg, tmp))
        return out
    P += row_allreduce('v72', 'v73')
    P.append(valu('v_mul_f32', 'v72', 1.0 / 640.0, 'v72'))
    for r in range(40):
        P.append(valu('v_sub_f32', v(80 + r % 8), v(Fv + r), 'v72'))
        if r < 4:
            P.append(valu('v_mul_f32', v(76 + r), v(80 + r % 8), v(80 + r % 8)))
        else:
            P.append(valu('v_fmac_f32', v(76 + r % 4), v(80 + r % 8), v(80 + r % 8)))
    P += [valu('v_add_f32', 'v76', 'v76', 'v77'), valu('v_add_f32', 'v78', 'v78', 'v79'), valu('v_add_f32', 'v76', 'v76', 'v78')]
    P += row_allreduce('v76', 'v73')
    P.append(valu('v_mul_f32', 'v76', 1.0 / 640.0, 'v76'))
    P += [valu('v_cvt_pk_bf16_f32', 'v73', 'v72', 'v76'),
          valu('v_lshlrev_b32', 'v72', 16, 'v73'),
          valu('v_and_b32', 'v76', 0xffff0000, 'v73'),
          valu('v_add_f32', 'v76', 1e-5, 'v76'),
          valu('v_cvt_pk_bf16_f32', 'v76', 'v76', 'v76'),
          valu('v_lshlrev_b32', 'v76', 16, 'v76'),
          valu('v_sqrt_f32', 'v76', 'v76'),
          valu('v_cvt_pk_bf16_f32', 'v76', 'v76', 'v76'),
          valu('v_lshlrev_b32', 'v76', 16, 'v76'),
          valu('v_rcp_f32', 'v77', 'v76')]
    for r in range(20):
        x0, x1 = v(Fv + 2 * r), v(Fv + 2 * r + 1)
        t0, t1, t2, t3 = v(80 + (r % 2) * 4), v(81 + (r % 2) * 4), v(82 + (r % 2) * 4), v(83 + (r % 2) * 4)
        P += [valu('v_sub_f32', x0, x0, 'v72'), valu('v_sub_f32', x1, x1, 'v72'),
              valu('v_cvt_pk_bf16_f32', t0, x0, x1),
              valu('v_lshlrev_b32', x0, 16, t0), valu('v_and_b32', x1, 0xffff0000, t0),
              valu('v_mul_f32', t0, x0, 'v77'), valu('v_mul_f32', t1, x1, 'v77'),
              valu('v_fma_f32', t2, '-' + t0, 'v76', x0), valu('v_fma_f32', t3, '-' + t1, 'v76', x1),
              valu('v_fmac_f32', t0, t2, 'v77'), valu('v_fmac_f32', t1, t3, 'v77'),
              valu('v_cvt_pk_bf16_f32', v(X + r), t0, t1)]
        if r % 4 == 3:
            n = r // 4
            P.append(buf_store(v(X + 4 * n, 4), 'v4', s(12, 4), s(20 + n)))
    P += [label('L_k1_end'), endpgm()]
    return kernel_text('k1_ln_kernel', P, 96, 96)


def lane_tr_part(dst, lane, t0, t1, hh_stride, g1_stride, row_stride):
    out = [valu('v_lshrrev_b32', t0, 5, lane),
           valu('v_mul_u32_u24', dst, hh_stride, t0),
           valu('v_bfe_u32', t0, lane, 2, 2),
           valu('v_mul_u32_u24', t0, row_stride, t0),
           valu('v_add_u32', dst, dst, t0),
           valu('v_bfe_u32', t0, lane, 4, 1),
           valu('v_mul_u32_u24', t0, g1_stride, t0),
           valu('v_add_u32', dst, dst, t0),
           valu('v_and_b32', t0, 1, lane),
           valu('v_lshlrev_b32', t0, 4, t0),
           valu('v_bfe_u32', t1, lane, 1, 1),
           valu('v_lshl_add_u32', t0, t1, 3, t0),
           valu('v_add_u32', dst, dst, t0)]
    return out


SLOT1 = 37120
GU_OFF = 24576
UP_REL = 6272
UNIT = 24576
RING2 = 1024
K2_LDS = 148480
THRESH = 24.0


def k2():
    P = []
    S_WQ, S_GU, S_K, S_V, S_WS = 4, 8, 12, 16, 20
    sWAVE, sHEAD, sQB = 's24', 's25', 's26'
    sT = ['s27', 's28', 's29', 's30', 's31']
    sBASE = 's42'
    sKROW = 's43'
    sGROW = 's44'
    sXOFF = 's45'
    sCNT = 's46'
    sWM0 = 's47'
    sGM0 = 's48'
    sC = 's49'
    sRD = 's50'
    sWR = 's51'
    sKT = 's52'
    sVT = 's53'
    sPEND = 's54'
    sKM0 = 's55'
    sVM0 = 's56'
    sFO = ['s57', 's58', 's59']
    sFH = 's62'
    sTHR = 's63'
    sK0, sK1 = 's64', 's65'
    LINK = 's[60:61]'

    vL = 'v192'
    vDQ = [v(193 + i) for i in range(6)]
    vDG = [v(199 + i) for i in range(3)]
    vAqL, vAgL, vAq, vAg = 'v202', 'v203', 'v204', 'v205'
    vX = ['v206', 'v207']
    vDK, vDVa, vDVb = 'v208', 'v209', 'v210'
    vKL = 'v211'
    vK = [v(212 + i) for i in range(4)]
    vV = 'v216'
    vM = ['v217', 'v218']
    vLs = ['v219', 'v220']
    vF = ['v221', 'v222']
    vFO = ['v223', 'v224']
    vMX = ['v225', 'v226']
    vT = [v(227 + i) for i in range(29)]

    def qacc(t, b):
        return v(16 * (2 * t + b), 16)

    def qfrag(b, ks):
        t, u = ks // 2, ks % 2
        return v(8 * (2 * t + b) + 4 * u, 4)

    def guacc(j, b):
        return a(16 * (2 * j + b), 16)

    def xb(kslot, b):
        return a(96 + 8 * kslot + 4 * b, 4)

    def afrag1(F):
        return 160 + 4 * (F % 12)

    def afrag2(F):
        return 208 + 4 * (F % 12)

    def sacc(par, b):
        return 96 + 32 * par + 16 * b

    def pfrag(par, b, u):
        return v(160 + 16 * par + 8 * b + 4 * u, 4)

    def oacc(t, b):
        return 16 * (2 * t + b)

    P += [scmp('s_cmp_ge_u32', 's2', 256), raw('s_cbranch_scc1 L_k2_end', 'br', rd=['scc'])]
    P += [sload(s(32, 4), 's[0:1]', 8), sload(s(36, 2), 's[0:1]', 24), sload(s(68, 4), 's[0:1]', 48), sload(s(40, 2), 's[0:1]', 88)]
    P += [valu('v_lshrrev_b32', 'v1', 6, 'v0'), valu('v_and_b32', vL, 63, 'v0'), readfirstlane(sWAVE, 'v1')]
    P += [salu('s_and_b32', sT[0], 's2', 7), salu('s_lshl_b32', sT[0], sT[0], 2),
          salu('s_lshr_b32', sT[1], 's2', 3), salu('s_and_b32', sT[1], sT[1], 3),
          salu('s_add_u32', sHEAD, sT[0], sT[1]), salu('s_lshr_b32', sQB, 's2', 5)]
    P += [salu('s_lshl_b32', sT[0], sQB, 3), salu('s_lshl_b32', sT[1], sWAVE, 1), salu('s_add_u32', sT[0], sT[0], sT[1]),
          salu('s_mul_i32', sT[1], sT[0], 40960), salu('s_mul_i32', sT[2], sT[0], 491520),
          valu('v_lshlrev_b32', 'v1', 4, vL),
          valu('v_add_u32', vX[0], sT[1], 'v1'), valu('v_add_u32', vX[1], 40960, vX[0]),
          valu('v_add_u32', vFO[0], sT[2], 'v1'), valu('v_add_u32', vFO[1], 491520, vFO[0])]
    P += [valu('v_bfe_u32', 'v2', vL, 2, 2),
          valu('v_and_b32', 'v3', 3, vL), valu('v_lshlrev_b32', 'v3', 4, 'v3'),
          valu('v_lshrrev_b32', 'v4', 4, vL), valu('v_lshl_add_u32', 'v4', 'v4', 6, 'v3'),
          valu('v_bfe_u32', 'v5', vL, 4, 1), valu('v_lshl_add_u32', 'v5', 'v5', 6, 'v3'), valu('v_add_u32', 'v5', 256, 'v5'),
          valu('v_lshrrev_b32', 'v6', 5, vL), valu('v_lshl_add_u32', 'v6', 'v6', 2, 'v2'),
          salu('s_lshl_b32', sT[0], sWAVE, 4),
          valu('v_add_u32', 'v7', sT[0], 'v2'), valu('v_add_u32', 'v8', sT[0], 'v6'),
          valu('v_mul_u32_u24', 'v7', 12288, 'v7'), valu('v_mul_u32_u24', 'v8', 12288, 'v8'),
          valu('v_add_u32', vDQ[0], 'v7', 'v4'), valu('v_add_u32', vDQ[2], 'v8', 'v5'),
          valu('v_add_u32', vDQ[1], 4 * 12288, vDQ[0]), valu('v_add_u32', vDQ[3], 8 * 12288, vDQ[0]),
          valu('v_add_u32', vDQ[4], 12 * 12288, vDQ[0]), valu('v_add_u32', vDQ[5], 8 * 12288, vDQ[2])]
    P += [salu('s_lshl_b32', sT[0], sWAVE, 3),
          valu('v_add_u32', 'v7', sT[0], 'v2'), valu('v_add_u32', 'v8', sT[0], 'v6'),
          valu('v_mul_u32_u24', 'v7', 384, 'v7'), valu('v_mul_u32_u24', 'v8', 384, 'v8'),
          valu('v_add_u32', vDVa, 'v7', 'v4'), valu('v_add_u32', vDVb, 'v8', 'v5')]
    P += [valu('v_lshrrev_b32', 'v7', 3, vL), valu('v_add_u32', 'v7', sT[0], 'v7'),
          valu('v_bfe_u32', 'v8', 'v7', 1, 3), valu('v_and_b32', 'v9', 7, vL), valu('v_xor_b32', 'v8', 'v8', 'v9'),
          valu('v_mul_u32_u24', 'v7', 384, 'v7'), valu('v_lshl_add_u32', vDK, 'v8', 4, 'v7')]
    P += [salu('s_and_b32', sT[0], sWAVE, 1), salu('s_mul_i32', sT[0], sT[0], 192), salu('s_mov_b32', sT[1], 43691)]
    for n in range(3):
        P += [valu('v_add_u32', 'v7', sT[0], vL), valu('v_add_u32', 'v7', 64 * n, 'v7'),
              valu('v_mul_u32_u24', 'v8', sT[1], 'v7'), valu('v_lshrrev_b32', 'v8', 18, 'v8'),
              valu('v_mul_u32_u24', 'v9', 6, 'v8'), valu('v_sub_u32', 'v9', 'v7', 'v9'),
              valu('v_mul_u32_u24', 'v8', 3072, 'v8'), valu('v_lshl_add_u32', vDG[n], 'v9', 4, 'v8')]
    P += [salu('s_mul_i32', sT[0], sHEAD, 384)]
    P += add64(36, 37, sT[0])
    P += [salu('s_sub_u32', sT[1], 640 * 12288, sT[0])]
    P += srd(S_WQ, 's36', 's37', sT[1])
    P += srd(S_WS, 's40', 's41', WS_BYTES)
    P += [scmp('s_cmp_lt_u32', sWAVE, 2), salu('s_cselect_b32', 's68', 's68', 's70'), salu('s_cselect_b32', 's69', 's69', 's71'),
          salu('s_mul_i32', sT[0], sHEAD, 96)]
    P += add64(68, 69, sT[0])
    P += [salu('s_sub_u32', sT[1], 640 * 3072, sT[0])]
    P += srd(S_GU, 's68', 's69', sT[1])
    P += [salu('s_mul_i32', sT[0], sHEAD, 786432), salu('s_add_u32', sT[0], sT[0], 589824)]
    P += add64(32, 33, sT[0]) + add64(34, 35, sT[0])
    P += srd(S_K, 's32', 's33', 196608) + srd(S_V, 's34', 's35', 196608)
    P += [salu('s_mul_i32', sWM0, sWAVE, 6144),
          salu('s_lshr_b32', sT[0], sWAVE, 1), salu('s_mul_i32', sT[0], sT[0], UP_REL),
          salu('s_and_b32', sT[1], sWAVE, 1), salu('s_mul_i32', sT[1], sT[1], 3072),
          salu('s_add_u32', sGM0, sT[0], sT[1]), salu('s_add_u32', sGM0, sGM0, GU_OFF),
          salu('s_lshl_b32', sKM0, sWAVE, 10),
          salu('s_mul_i32', sVM0, sWAVE, 3072), salu('s_add_u32', sVM0, sVM0, 12288)]
    P += [salu('s_mov_b32', sKROW, 0), salu('s_mov_b32', sGROW, 0), salu('s_mov_b32', sXOFF, XF_OFF)]

    def dma_proj(slot_s, slot_imm, tag):
        g = []
        for n in range(6):
            g.append([salu('s_add_u32', sT[3], sWM0, slot_imm + 1024 * n) if slot_s is None else
                      salu('s_add_u32', sT[3], sWM0, slot_s),
                      ] + ([] if slot_s is None else [salu('s_add_u32', sT[3], sT[3], slot_imm + 1024 * n)]) +
                     [salu('s_mov_b32', 'm0', sT[3]), dma(vDQ[n], s(S_WQ, 4), sKROW, tag=tag)])
        for n in range(3):
            g.append([salu('s_add_u32', sT[3], sGM0, slot_imm + 1024 * n) if slot_s is None else
                      salu('s_add_u32', sT[3], sGM0, slot_s),
                      ] + ([] if slot_s is None else [salu('s_add_u32', sT[3], sT[3], slot_imm + 1024 * n)]) +
                     [salu('s_mov_b32', 'm0', sT[3]), dma(vDG[n], s(S_GU, 4), sGROW, tag=tag)])
        g.append([salu('s_add_u32', sKROW, sKROW, 64 * 12288), salu('s_add_u32', sGROW, sGROW, 64 * 3072)])
        return g

    def xb_load(kslot, sp):
        return [buf_load(xb(kslot, b), vX[b], s(S_WS, 4), sXOFF, 1024 * sp) for b in range(2)]

    P += xb_load(0, 0)
    P += dma_proj(None, 0, ('P', 0))
    P += xb_load(1, 1) + xb_load(2, 2) + xb_load(3, 3)
    P.append(salu('s_add_u32', sXOFF, sXOFF, 4096))
    P += dma_proj(None, SLOT1, ('P', 1))
    for sp in range(4):
        P += xb_load(4 + sp, sp)
    P.append(salu('s_add_u32', sXOFF, sXOFF, 4096))
    P += lane_tr_part(vAqL, vL, 'v1', 'v2', 3072, 32, 64)
    P += lane_tr_part(vAgL, vL, 'v1', 'v2', 8 * 96, UP_REL, 96)
    P += [valu('v_and_b32', 'v1', 19, vL),
          valu('v_bfe_u32', 'v2', vL, 2, 1), valu('v_lshl_add_u32', 'v1', 'v2', 3, 'v1'),
          valu('v_bfe_u32', 'v2', vL, 3, 1), valu('v_lshl_add_u32', 'v1', 'v2', 2, 'v1'),
          valu('v_bfe_u32', 'v2', 'v1', 1, 3), valu('v_lshrrev_b32', 'v3', 5, vL), valu('v_xor_b32', 'v2', 'v2', 'v3'),
          valu('v_lshlrev_b32', 'v1', 7, 'v1'), valu('v_lshl_add_u32', vKL, 'v2', 4, 'v1')]
    P += [salu('s_mov_b32', sC, float(LOG2E / math.sqrt(192.0))), salu('s_mov_b32', sTHR, THRESH),
          salu('s_mov_b32', sPEND, 0),
          salu('s_mul_i32', sT[0], sHEAD, 12 * 1024), salu('s_add_u32', sFO[0], sT[0], F_OFF),
          salu('s_add_u32', sFO[1], sFO[0], 4096), salu('s_add_u32', sFO[2], sFO[0], 8192),
          salu('s_mul_i32', sT[0], sHEAD, 3 * 1024), salu('s_add_u32', sFH, sT[0], F_OFF + 384 * 1024),
          salu('s_mov_b32', sKT, 0), salu('s_mov_b32', sVT, 0),
          salu('s_mov_b32', sK0, float(-2.0 * math.sqrt(2.0 / math.pi) * LOG2E)),
          salu('s_mov_b32', sK1, float(-2.0 * math.sqrt(2.0 / math.pi) * LOG2E * 0.044715))]
    for b in range(2):
        P += [valu('v_mov_b32', vM[b], -3.0e38), valu('v_mov_b32', vLs[b], 0)]
    for r in range(192):
        P.append(valu('v_mov_b32', v(r), 0))
    for r in range(96):
        P.append(valu('v_accvgpr_write_b32', a(r), 0))
    P += [salu('s_mov_b32', sBASE, 0)]

    D1 = 6

    def rd1(F):
        sp, f = F // 9, F % 9
        d = afrag1(F)
        out = []
        for q in range(2):
            if f < 6:
                off = sp * 6144 + (q * 1024 + f * 256 if f < 4 else 2048 + q * 512 + (f - 4) * 256)
                out.append(ds_read('ds_read_b64_tr_b16', a(d + 2 * q, 2), vAq, off))
            else:
                j = f - 6
                off = GU_OFF + (16 * sp + 4 * q) * 96 + 32 * j
                out.append(ds_read('ds_read_b64_tr_b16', a(d + 2 * q, 2), vAg, off))
        return out

    def set_rd1(slot_s, imm):
        if slot_s is None:
            return [valu('v_add_u32', vAq, imm, vAqL), valu('v_add_u32', vAg, imm, vAgL)]
        return [salu('s_add_u32', sT[4], slot_s, imm), valu('v_add_u32', vAq, sT[4], vAqL), valu('v_add_u32', vAg, sT[4], vAgL)]

    def dma_unit(tag, doK=True, doV=True, base_imm=None):
        g = []
        if doK:
            for ch in range(3):
                pre = [salu('s_add_u32', sT[3], sKM0, sWR), salu('s_add_u32', 'm0', sT[3], ch * 4096 - ch * 128)]
                g.append(pre + [dma(vDK, s(S_K, 4), sKT, ch * 128, tag=tag)])
            g.append([salu('s_add_u32', sKT, sKT, 12288)])
        if doV:
            g.append([salu('s_add_u32', sT[3], sVM0, sWR), salu('s_mov_b32', 'm0', sT[3]), dma(vDVa, s(S_V, 4), sVT, tag=tag)])
            g.append([salu('s_add_u32', sT[3], sVM0, sWR), salu('s_sub_u32', 'm0', sT[3], 512), dma(vDVa, s(S_V, 4), sVT, 1536, tag=tag)])
            g.append([salu('s_add_u32', sT[3], sVM0, sWR), salu('s_add_u32', 'm0', sT[3], 2048), dma(vDVb, s(S_V, 4), sVT, tag=tag)])
            g.append([salu('s_add_u32', sVT, sVT, 12288)])
        g.append([salu('s_add_u32', sWR, sWR, UNIT), scmp('s_cmp_ge_u32', sWR, RING2 + 6 * UNIT),
                  salu('s_cselect_b32', sWR, RING2, sWR)])
        return g

    def set_rd2():
        return [salu('s_add_u32', sRD, sRD, UNIT), scmp('s_cmp_ge_u32', sRD, RING2 + 6 * UNIT), salu('s_cselect_b32', sRD, RING2, sRD),
                valu('v_add_u32', vK[0], sRD, vKL), valu('v_add_u32', vV, sRD, vAqL),
                valu('v_xor_b32', vK[1], 32, vK[0]), valu('v_xor_b32', vK[2], 64, vK[0]), valu('v_xor_b32', vK[3], 96, vK[0])]

    def rdK(F, ks):
        return [ds_read('ds_read_b128', a(afrag2(F), 4), vK[ks & 3], (ks >> 2) * 4096)]

    def rdV(F, u, t):
        d = afrag2(F)
        out = []
        for q in range(2):
            off = 12288 + u * 6144 + (q * 1024 + t * 256 if t < 4 else 2048 + q * 512 + (t - 4) * 256)
            out.append(ds_read('ds_read_b64_tr_b16', a(d + 2 * q, 2), vV, off))
        return out

    P += [barrier(waitjob=('P', 0))]
    P += set_rd1(None, 0)
    for F in range(D1):
        P += rd1(F)

    def stage1(par, jobtag_next, dma_groups, do_xb, nxt_reads, nxt_setup, extra_fill=()):
        M = []
        for m in range(72):
            sp, f, b = m // 18, (m % 18) // 2, m % 2
            F = 9 * sp + f
            A = a(afrag1(F), 4)
            B = xb(4 * par + sp, b)
            D = qacc(f, b) if f < 6 else guacc(f - 6, b)
            M.append(mfma(D, A, B))
        fill = []
        for F in range(D1, 36):
            for k, ins in enumerate(rd1(F)):
                fill.append((2 * (F - D1) + k + 0.1, ins))
        pb = 2 * (36 - D1)
        fill.append((pb - 0.5, barrier(waitjob=jobtag_next)))
        for ins in nxt_setup:
            fill.append((pb - 0.4, ins))
        for F in range(D1):
            for k, ins in enumerate(nxt_reads(F)):
                fill.append((pb + 2 * F + k + 0.1, ins))
        ng = len(dma_groups)
        for n, g in enumerate(dma_groups):
            for ins in g:
                fill.append((1 + n * (50.0 / max(ng, 1)) + 0.5, ins))
        if do_xb:
            for sp in range(4):
                for ins in xb_load(4 * par + sp, sp):
                    fill.append((18 * sp + 17.6, ins))
            fill.append((71.7, salu('s_add_u32', sXOFF, sXOFF, 4096)))
        fill += list(extra_fill)
        return interleave(M, fill)

    body = []
    body += [salu('s_xor_b32', sT[2], sBASE, 2 * SLOT1)]
    body += stage1(0, lambda it: ('P', 2 * it + 1), dma_proj(sT[2], 0, lambda it: ('P', 2 * it + 2)), True, rd1, set_rd1(sBASE, SLOT1))
    body += stage1(1, lambda it: ('P', 2 * it + 2), dma_proj(sT[2], SLOT1, lambda it: ('P', 2 * it + 3)), True, rd1, set_rd1(sT[2], 0))
    body += [salu('s_mov_b32', sBASE, sT[2]),
             salu('s_sub_u32', sCNT, sCNT, 1), scmp('s_cmp_lg_u32', sCNT, 0), raw('s_cbranch_scc1 L_k2_p1', 'br', rd=['scc'])]
    P.append(salu('s_mov_b32', sCNT, 4))
    P.append(Loop('L_k2_p1', 4, body))
    P += [salu('s_mov_b32', sWR, RING2 + 3 * UNIT), salu('s_mov_b32', sRD, RING2 + 2 * UNIT)]
    P += stage1(0, ('P', 9), dma_unit(('U', 0), True, False), False, rd1, set_rd1(None, SLOT1))
    D2 = 6
    P += stage1(1, ('U', 0), dma_unit(('U', 1), True, False) + dma_unit(('U', 2)), False,
                lambda F: rdK(F, F), set_rd2(),
                extra_fill=[(54 + k // 8 + 4 + 0.6 + 0.01 * (k % 8), valu('v_cvt_pk_bf16_f32', v(k), v(2 * k), v(2 * k + 1))) for k in range(96)])

    def q_cvt():
        return [valu('v_cvt_pk_bf16_f32', v(k), v(2 * k), v(2 * k + 1)) for k in range(96)]

    def gu_math():
        out = []
        for j in range(3):
            for b in range(2):
                base = 16 * (2 * j + b)
                hreg = 160 + 4 * ((2 * j + b) % 4)
                hreg = 176 + 4 * ((2 * j + b) % 4)
                for e2 in range(4):
                    tt = []
                    for k in range(2):
                        e = 2 * e2 + k
                        g, u_, t = vT[3 * k + 6 * (e2 % 2)], vT[3 * k + 1 + 6 * (e2 % 2)], vT[3 * k + 2 + 6 * (e2 % 2)]
                        tt.append((g, u_, t))
                        out += [valu('v_accvgpr_read_b32', g, a(base + e)), valu('v_accvgpr_read_b32', u_, a(base + 8 + e))]
                    for g, u_, t in tt:
                        out += [valu('v_mul_f32', t, g, g)]
                    for g, u_, t in tt:
                        out += [valu('v_fma_f32', t, t, sK1, sK0) if False else valu('v_mul_f32', t, sK1, t)]
                    for g, u_, t in tt:
                        out += [valu('v_add_f32', t, sK0, t)]
                    for g, u_, t in tt:
                        out += [valu('v_mul_f32', t, t, g)]
                    for g, u_, t in tt:
                        out += [valu('v_exp_f32', t, t)]
                    for g, u_, t in tt:
                        out += [valu('v_mul_f32', g, g, u_)]
                    for g, u_, t in tt:
                        out += [valu('v_add_f32', t, 1.0, t)]
                    for g, u_, t in tt:
                        out += [valu('v_rcp_f32', t, t)]
                    for k in range(2):
                        e = 2 * e2 + k
                        out += [valu('v_accvgpr_write_b32', a(base + e), 0), valu('v_accvgpr_write_b32', a(base + 8 + e), 0)]
                    for g, u_, t in tt:
                        out += [valu('v_mul_f32', g, g, t)]
                    out += [valu('v_cvt_pk_bf16_f32', v(hreg + e2), tt[0][0], tt[1][0])]
                out += [buf_store(v(hreg, 4), vFO[b], s(S_WS, 4), sFH, 1024 * j)]
        return out

    def softmax_head(par):
        out = []
        for b in range(2):
            S = sacc(par, b)
            out.append(valu('v_max3_f32', vMX[b], v(S), v(S + 1), v(S + 2)))
            for k in range(3, 15, 2):
                out.append(valu('v_max3_f32', vMX[b], vMX[b], v(S + k), v(S + k + 1)))
            out.append(valu('v_max_f32', vMX[b], vMX[b], v(S + 15)))
        out += [valu('v_fma_f32', vT[12], vMX[0], sC, '-' + vM[0]), valu('v_fma_f32', vT[13], vMX[1], sC, '-' + vM[1]),
                valu('v_max_f32', vT[12], vT[12], vT[13]),
                vcmp('v_cmp_lt_f32', 'vcc', sTHR, vT[12])]
        lab = 'L_k2_sk%d' % softmax_head.n
        softmax_head.n += 1
        call = [raw('s_cbranch_vccz %s' % lab, 'br', rd=['vcc']),
                raw('s_call_b64 %s, L_k2_newmax' % LINK, 'br', rd=[vMX[0], vMX[1], vM[0], vM[1], vLs[0], vLs[1]],
                    wr=[vM[0], vM[1], vLs[0], vLs[1], vF[0], vF[1], LINK, sPEND, vT[12], vT[13], vT[14], vT[15]]),
                label(lab)]
        out.append(call)
        return out
    softmax_head.n = 0

    def softmax_body(par):
        out = []
        for b in range(2):
            S = sacc(par, b)
            for u in range(2):
                for k2_ in range(4):
                    r0, r1 = S + 8 * u + 2 * k2_, S + 8 * u + 2 * k2_ + 1
                    out += [valu('v_fma_f32', v(r0), v(r0), sC, '-' + vM[b]), valu('v_fma_f32', v(r1), v(r1), sC, '-' + vM[b]),
                            valu('v_exp_f32', v(r0), v(r0)), valu('v_exp_f32', v(r1), v(r1))]
                    pr = 160 + 16 * par + 8 * b + 4 * u + k2_
                    out += [('late', [valu('v_add_f32', vLs[b], vLs[b], v(r0)),
                                      valu('v_cvt_pk_bf16_f32', v(pr), v(r0), v(r1)),
                                      valu('v_add_f32', vLs[b], vLs[b], v(r1))])]
        res = []
        pend = []
        for x in out:
            if isinstance(x, tuple):
                pend.append(x[1])
                if len(pend) > 1:
                    res += pend.pop(0)
            else:
                res.append(x)
        for p_ in pend:
            res += p_
        return res

    def rescale_check():
        lab = 'L_k2_rs%d' % rescale_check.n
        rescale_check.n += 1
        return [scmp('s_cmp_eq_u32', sPEND, 0), raw('s_cbranch_scc1 %s' % lab, 'br', rd=['scc']),
                raw('s_call_b64 %s, L_k2_rescale' % LINK, 'br', rd=[vF[0], vF[1], a(0, 192)], wr=[LINK, sPEND, a(0, 192), vT[16], vT[17], vT[18], vT[19]]),
                label(lab)]
    rescale_check.n = 0

    def iter2(par, doQK, doSM, doPV, nextQK, nextPV, jobnext, dma_groups, extra=None, pre=None, resc=True, epi=None):
        M = []
        frs = []
        if doQK:
            for ks in range(12):
                frs.append(('K', ks))
        if doPV:
            for u in range(2):
                for t in range(6):
                    frs.append(('V', u, t))
        nf = len(frs)
        for F, fr in enumerate(frs):
            A = a(afrag2(F), 4)
            for b in range(2):
                if fr[0] == 'K':
                    ks = fr[1]
                    D = v(sacc(par ^ 1, b), 16)
                    M.append(mfma(D, A, qfrag(b, ks), 0 if ks == 0 else D))
                else:
                    _, u, t = fr
                    D = a(oacc(t, b), 16)
                    M.append(mfma(D, A, pfrag(par ^ 1, b, u)))
        nM = len(M)

        def rd(F, fr):
            return rdK(F, fr[1]) if fr[0] == 'K' else rdV(F, fr[1], fr[2])
        fill = []
        for F in range(D2, nf):
            for k, ins in enumerate(rd(F, frs[F])):
                fill.append((2 * (F - D2) + k + 0.1, ins))
        if jobnext is not None:
            pb = 2 * (nf - D2)
            fill.append((pb - 0.5, barrier(waitjob=jobnext)))
            for ins in set_rd2():
                fill.append((pb - 0.4, ins))
            nfr = [('K', ks) for ks in range(12)] if nextQK else [('V', 0, t) for t in range(6)]
            for F in range(D2):
                for k, ins in enumerate(rd(nf + F, nfr[F])):
                    fill.append((pb + 2 * F + k + 0.1, ins))
        ng = len(dma_groups)
        for n, g in enumerate(dma_groups):
            for ins in g:
                fill.append((1 + n * ((nM - 14.0) / max(ng, 1)) + 0.5, ins))
        if pre:
            fill += pre
        vs = []
        if doSM:
            vs += softmax_head(par) + softmax_body(par)
        if extra:
            vs = extra(vs)
        if vs:
            fill += spread(vs, 0.2, nM - 0.5)
        if epi:
            fill += epi
        out = interleave(M, fill)
        if doSM and resc:
            out += rescale_check()
        return out

    pre = []
    gm = gu_math()
    zero2 = [valu('v_accvgpr_write_b32', a(r), 0) for r in range(96, 192)]
    h1 = len(gm) // 3
    P += iter2(1, True, False, False, True, False, ('U', 1), dma_unit(('U', 3)), extra=lambda vs: gm[:h1], pre=pre)
    P += iter2(0, True, True, False, True, True, ('U', 2), dma_unit(('U', 4)) + dma_unit(('U', 5)),
               extra=lambda vs: gm[h1:] + zero2 + vs, resc=False)
    P.append(salu('s_mov_b32', sPEND, 0))
    body = []
    body += iter2(1, True, True, True, True, True, lambda it: ('U', 2 * it + 3), dma_unit(lambda it: ('U', 2 * it + 6)))
    body += iter2(0, True, True, True, True, True, lambda it: ('U', 2 * it + 4), dma_unit(lambda it: ('U', 2 * it + 7)))
    body += [salu('s_sub_u32', sCNT, sCNT, 1), scmp('s_cmp_lg_u32', sCNT, 0), raw('s_cbranch_scc1 L_k2_p2', 'br', rd=['scc'])]
    P.append(salu('s_mov_b32', sCNT, 7))
    P.append(Loop('L_k2_p2', 7, body))
    for F in range(D2):
        P += rdV(F, 0, F)
    P += iter2(1, False, True, True, False, True, ('U', 17), [])
    P += iter2(0, False, False, True, False, False, None, [])
    for b in range(2):
        P += [valu('v_mov_b32', vT[0], vLs[b]), permlane32_swap(vT[0], vLs[b])]
        P += [valu('v_add_f32', vLs[b], vLs[b], vT[0]), valu('v_rcp_f32', vLs[b], vLs[b])]
    n = 0
    for t in range(6):
        for b in range(2):
            for u in range(2):
                base = oacc(t, b) + 8 * u
                tmp = 96 + 16 * (n % 4)
                n += 1
                for e in range(8):
                    P.append(valu('v_accvgpr_read_b32', v(tmp + e), a(base + e)))
                for e in range(8):
                    P.append(valu('v_mul_f32', v(tmp + e), v(tmp + e), vLs[b]))
                for e in range(4):
                    P.append(valu('v_cvt_pk_bf16_f32', v(tmp + 8 + e), v(tmp + 2 * e), v(tmp + 2 * e + 1)))
                ks = 2 * t + u
                P.append(buf_store(v(tmp + 8, 4), vFO[b], s(S_WS, 4), sFO[ks // 4], 1024 * (ks % 4)))
    P += [label('L_k2_end'), endpgm()]

    sub = []
    sub.append('L_k2_newmax:')
    sub.append('  s_nop 4')
    for b in range(2):
        t0, t1 = vT[12 + 2 * b], vT[13 + 2 * b]
        sub += ['  v_mov_b32 %s, %s' % (t0, vMX[b]),
                '  v_mov_b32 %s, %s' % (t1, vMX[b]),
                '  s_nop 1',
                '  v_permlane32_swap_b32 %s, %s' % (t0, t1),
                '  s_nop 1',
                '  v_max_f32 %s, %s, %s' % (t0, t0, t1),
                '  v_mul_f32 %s, %s, %s' % (t0, sC, t0),
                '  v_max_f32 %s, %s, %s' % (t0, t0, vM[b]),
                '  v_sub_f32 %s, %s, %s' % (t1, vM[b], t0),
                '  v_exp_f32 %s, %s' % (vF[b], t1),
                '  v_mov_b32 %s, %s' % (vM[b], t0),
                '  s_nop 1',
                '  v_mul_f32 %s, %s, %s' % (vLs[b], vLs[b], vF[b])]
    sub += ['  s_mov_b32 %s, 1' % sPEND, '  s_nop 4', '  s_setpc_b64 %s' % LINK]
    sub.append('L_k2_rescale:')
    sub.append('  s_nop 15')
    for t in range(6):
        for b in range(2):
            for r4 in range(4):
                base = oacc(t, b) + 4 * r4
                for e in range(4):
                    sub.append('  v_accvgpr_read_b32 %s, a%d' % (vT[16 + e], base + e))
                for e in range(4):
                    sub.append('  v_mul_f32 %s, %s, %s' % (vT[16 + e], vT[16 + e], vF[b]))
                for e in range(4):
                    sub.append('  v_accvgpr_write_b32 a%d, %s' % (base + e, vT[16 + e]))
    sub += ['  s_mov_b32 %s, 0' % sPEND, '  s_nop 4', '  s_setpc_b64 %s' % LINK]
    return kernel_text('k2_attn_kernel', P, 512, 256, '\n'.join(sub) + '\n')


K3_SLOT = 20480
K3_NSLOT = 6
K3_LDS = K3_SLOT * K3_NSLOT


def k3():
    P = []
    S_W, S_WS = 4, 8
    sWAVE, sQB, sCT, sCH = 's24', 's25', 's26', 's27'
    sT = ['s28', 's29', 's30', 's31', 's32']
    sROW, sFOFF, sCNT, sRD, sWR, sWM0 = 's42', 's43', 's44', 's45', 's46', 's47'
    sPO = 's48'
    vL = 'v192'
    vD = [v(193 + i) for i in range(5)]
    vA0L, vA1L, vA0, vA1 = 'v198', 'v199', 'v200', 'v201'
    vX = ['v202', 'v203']
    vPO = ['v204', 'v205']

    def acc(t, b):
        return v(16 * (2 * t + b), 16)

    def fb(kslot, b):
        return a(8 * kslot + 4 * b, 4)

    def afr(F):
        return 128 + 4 * (F % 20)

    P += [scmp('s_cmp_ge_u32', 's2', 256), raw('s_cbranch_scc1 L_k3_end', 'br', rd=['scc'])]
    P += [sload(s(34, 2), 's[0:1]', 32), sload(s(36, 2), 's[0:1]', 64), sload(s(40, 2), 's[0:1]', 88)]
    P += [valu('v_lshrrev_b32', 'v1', 6, 'v0'), valu('v_and_b32', vL, 63, 'v0'), readfirstlane(sWAVE, 'v1')]
    P += [salu('s_and_b32', sCH, 's2', 7), salu('s_lshr_b32', sT[0], 's2', 3), salu('s_and_b32', sCT, sT[0], 3),
          salu('s_lshr_b32', sQB, 's2', 5)]
    P += [salu('s_lshl_b32', sT[0], sCH, 6), salu('s_mul_i32', sT[1], sCH, 48), salu('s_add_u32', sT[1], sT[1], 384 - 288),
          scmp('s_cmp_lt_u32', sCH, 6), salu('s_cselect_b32', sT[0], sT[0], sT[1]),
          salu('s_cselect_b32', sCNT, 4, 3)]
    P += [salu('s_lshl_b32', sFOFF, sT[0], 10), salu('s_add_u32', sFOFF, sFOFF, F_OFF)]
    P += [salu('s_lshl_b32', sT[1], sQB, 3), salu('s_lshl_b32', sT[2], sWAVE, 1), salu('s_add_u32', sT[1], sT[1], sT[2]),
          salu('s_mul_i32', sT[2], sT[1], 491520),
          valu('v_lshlrev_b32', 'v1', 4, vL),
          valu('v_add_u32', vX[0], sT[2], 'v1'), valu('v_add_u32', vX[1], 491520, vX[0])]
    P += [salu('s_lshl_b32', sT[2], sCH, 6), salu('s_add_u32', sT[2], sT[2], sT[1]), salu('s_lshl_b32', sT[2], sT[2], 2),
          salu('s_add_u32', sT[2], sT[2], sCT), salu('s_mul_i32', sT[2], sT[2], 20480), salu('s_add_u32', sT[2], sT[2], P_OFF),
          valu('v_add_u32', vPO[0], sT[2], 'v1'), valu('v_add_u32', vPO[1], 4 * 20480, vPO[0])]
    P += [scmp('s_cmp_lt_u32', sCH, 6), salu('s_cselect_b32', 's34', 's34', 's36'), salu('s_cselect_b32', 's35', 's35', 's37'),
          salu('s_cselect_b32', sT[2], 0, 384), salu('s_cselect_b32', sT[3], 4, 1), salu('s_mul_i32', sT[3], sT[3], 1536 * 1280),
          salu('s_sub_u32', sT[2], sT[0], sT[2]), salu('s_mul_i32', sT[2], sT[2], 16 * 1280),
          salu('s_mul_i32', sT[4], sCT, 320), salu('s_add_u32', sT[2], sT[2], sT[4]),
          salu('s_sub_u32', sT[3], sT[3], sT[2])]
    P += add64(34, 35, sT[2])
    P += srd(S_W, 's34', 's35', sT[3])
    P += srd(S_WS, 's40', 's41', WS_BYTES)
    P += [valu('v_bfe_u32', 'v2', vL, 2, 2),
          valu('v_and_b32', 'v3', 3, vL), valu('v_lshlrev_b32', 'v3', 4, 'v3'),
          valu('v_lshrrev_b32', 'v4', 4, vL), valu('v_lshl_add_u32', 'v5', 'v4', 6, 'v3'),
          salu('s_lshl_b32', sT[0], sWAVE, 4),
          valu('v_add_u32', 'v6', sT[0], 'v2'), valu('v_mul_u32_u24', 'v7', 1280, 'v6'), valu('v_add_u32', vD[0], 'v7', 'v5'),
          valu('v_add_u32', vD[1], 4 * 1280, vD[0]), valu('v_add_u32', vD[2], 8 * 1280, vD[0]), valu('v_add_u32', vD[3], 12 * 1280, vD[0]),
          valu('v_lshl_add_u32', 'v6', 'v4', 2, 'v6'), valu('v_mul_u32_u24', 'v7', 1280, 'v6'),
          valu('v_add_u32', 'v7', 'v7', 'v3'), valu('v_add_u32', vD[4], 256, 'v7')]
    P += [salu('s_mul_i32', sWM0, sWAVE, 5120), salu('s_mov_b32', sROW, 0), salu('s_mov_b32', sWR, 0), salu('s_mov_b32', sRD, 0)]

    def dma_stage(tag):
        g = []
        for n in range(5):
            g.append([salu('s_add_u32', sT[3], sWM0, sWR), salu('s_add_u32', 'm0', sT[3], 1024 * n), dma(vD[n], s(S_W, 4), sROW, tag=tag)])
        g.append([salu('s_add_u32', sROW, sROW, 64 * 1280),
                  salu('s_add_u32', sWR, sWR, K3_SLOT), scmp('s_cmp_ge_u32', sWR, K3_LDS), salu('s_cselect_b32', sWR, 0, sWR)])
        return g

    def fb_load(kslot, sp):
        return [buf_load(fb(kslot, b), vX[b], s(S_WS, 4), sFOFF, 1024 * sp) for b in range(2)]

    LOOK = K3_NSLOT - 2
    for g in range(4):
        for sp in range(4):
            P += fb_load(4 * g + sp, sp)
            if sp == 0:
                P += dma_stage(('S', g))
        P.append(salu('s_add_u32', sFOFF, sFOFF, 4096))
    P += lane_tr_part(vA0L, vL, 'v1', 'v2', 2048, 32, 64)
    P += lane_tr_part(vA1L, vL, 'v1', 'v2', 512, 32, 64)
    for r in range(160):
        P.append(valu('v_mov_b32', v(r), 0))

    D = 6

    def rd(F):
        sp, t = F // 5, F % 5
        d = afr(F)
        out = []
        for q in range(2):
            if t < 4:
                out.append(ds_read('ds_read_b64_tr_b16', a(d + 2 * q, 2), vA0, sp * 5120 + q * 1024 + t * 256))
            else:
                out.append(ds_read('ds_read_b64_tr_b16', a(d + 2 * q, 2), vA1, sp * 5120 + 4096 + q * 256))
        return out

    def set_rd(first=False):
        out = []
        if not first:
            out += [salu('s_add_u32', sRD, sRD, K3_SLOT), scmp('s_cmp_ge_u32', sRD, K3_LDS), salu('s_cselect_b32', sRD, 0, sRD)]
        out += [valu('v_add_u32', vA0, sRD, vA0L), valu('v_add_u32', vA1, sRD, vA1L)]
        return out

    P += [barrier(waitjob=('S', 0))]
    P += set_rd(True)
    for F in range(D):
        P += rd(F)

    def stage(q4):
        M = []
        for m in range(40):
            sp, t, b = m // 10, (m % 10) // 2, m % 2
            M.append(mfma(acc(t, b), a(afr(5 * sp + t), 4), fb(4 * q4 + sp, b)))
        fill = []
        for F in range(D, 20):
            for k, ins in enumerate(rd(F)):
                fill.append((2 * (F - D) + k + 0.1, ins))
        pb = 2 * (20 - D)
        fill.append((pb - 0.5, barrier(waitjob=lambda it: ('S', 4 * it + q4 + 1))))
        for ins in set_rd():
            fill.append((pb - 0.4, ins))
        for F in range(D):
            for k, ins in enumerate(rd(F)):
                fill.append((pb + 2 * F + k + 0.1, ins))
        gs = dma_stage(lambda it: ('S', 4 * it + q4 + LOOK))
        for n, g in enumerate(gs):
            for ins in g:
                fill.append((1 + n * 4 + 0.5, ins))
        for sp in range(4):
            for ins in fb_load(4 * q4 + sp, sp):
                fill.append((10 * sp + 9.6, ins))
        fill.append((39.7, salu('s_add_u32', sFOFF, sFOFF, 4096)))
        return interleave(M, fill)

    body = []
    for q4 in range(4):
        body += stage(q4)
    body += [salu('s_sub_u32', sCNT, sCNT, 1), scmp('s_cmp_lg_u32', sCNT, 0), raw('s_cbranch_scc1 L_k3_loop', 'br', rd=['scc'])]
    P.append(Loop('L_k3_loop', 4, body))
    P.append(waitcnt(vm=20))
    for k in range(5):
        P.append(salu('s_mov_b32', s(50 + k), 4096 * k))
    for t in range(5):
        for b in range(2):
            for g4 in range(4):
                P.append(buf_store(v(16 * (2 * t + b) + 4 * g4, 4), vPO[b], s(S_WS, 4), s(50 + t), 1024 * g4))
    P += [label('L_k3_end'), endpgm()]
    return kernel_text('k3_proj_kernel', P, 512, 256)


def k4():
    P = []
    P += [scmp('s_cmp_ge_u32', 's2', 640), raw('s_cbranch_scc1 L_k4_end', 'br', rd=['scc'])]
    P += [sload(s(4, 2), 's[0:1]', 0), sload(s(6, 2), 's[0:1]', 72), sload(s(40, 2), 's[0:1]', 88)]
    P += [valu('v_lshrrev_b32', 'v1', 6, 'v0'), valu('v_and_b32', 'v2', 63, 'v0'), readfirstlane('s24', 'v1')]
    P += [salu('s_lshl_b32', 's25', 's2', 2), salu('s_add_u32', 's25', 's25', 's24'),
          salu('s_mul_i32', 's26', 's25', 52429), salu('s_lshr_b32', 's26', 's26', 21),
          salu('s_mul_i32', 's27', 's26', 40), salu('s_sub_u32', 's27', 's25', 's27'),
          salu('s_lshl_b32', 's28', 's25', 11), salu('s_add_u32', 's28', 's28', P_OFF),
          valu('v_lshlrev_b32', 'v3', 4, 'v2'), valu('v_add_u32', 'v3', 's28', 'v3')]
    P += [salu('s_lshl_b32', 's29', 's26', 5), valu('v_and_b32', 'v4', 31, 'v2'), valu('v_add_u32', 'v4', 's29', 'v4'),
          valu('v_mul_u32_u24', 'v4', 1280, 'v4'), valu('v_lshrrev_b32', 'v5', 5, 'v2'), valu('v_lshl_add_u32', 'v4', 'v5', 4, 'v4'),
          salu('s_lshl_b32', 's29', 's27', 5), valu('v_add_u32', 'v4', 's29', 'v4')]
    P += srd(8, 's4', 's5', 2048 * 1280) + srd(12, 's6', 's7', 2048 * 1280) + srd(16, 's40', 's41', WS_BYTES)
    CH = 64 * 4 * 20480
    for c in range(8):
        P.append(salu('s_mov_b32', s(50 + c), CH * c))
    for c in range(8):
        for h in range(2):
            P.append(buf_load(v(16 + 8 * c + 4 * h, 4), 'v3', s(16, 4), s(50 + c), 1024 * h))
    P.append(buf_load(v(8, 4), 'v4', s(8, 4)))
    for c in range(1, 6):
        for e in range(8):
            P.append(valu('v_add_f32', v(16 + e), v(16 + e), v(16 + 8 * c + e)))
    for e in range(8):
        P.append(valu('v_add_f32', v(64 + e), v(64 + e), v(72 + e)))
    for e in range(8):
        P.append(valu('v_mul_f32', v(80 + e), -LOG2E, v(64 + e)))
    for e in range(8):
        P.append(valu('v_exp_f32', v(80 + e), v(80 + e)))
    for e in range(8):
        P.append(valu('v_add_f32', v(80 + e), 1.0, v(80 + e)))
    for e in range(8):
        P.append(valu('v_rcp_f32', v(80 + e), v(80 + e)))
    for e in range(8):
        P.append(valu('v_mul_f32', v(64 + e), v(64 + e), v(80 + e)))
    for r in range(4):
        P += [valu('v_lshlrev_b32', v(88 + 2 * r), 16, v(8 + r)), valu('v_and_b32', v(89 + 2 * r), 0xffff0000, v(8 + r))]
    for e in range(8):
        P.append(valu('v_fmac_f32', v(88 + e), v(16 + e), v(64 + e)))
    for r in range(4):
        P.append(valu('v_cvt_pk_bf16_f32', v(8 + r), v(88 + 2 * r), v(89 + 2 * r)))
    P.append(buf_store(v(8, 4), 'v4', s(12, 4)))
    P += [label('L_k4_end'), endpgm()]
    return kernel_text('k4_fin_kernel', P, 96, 96)


def main():
    hdr = open('cdna_kernels/%s.s.ref' % NAME).read().split('\n')
    com = [l for l in hdr if l.startswith(';') and '@launch' not in l and 'Override launch' not in l and 'grid=ceil' not in l]
    out = '\n'.join(com) + '\n'
    out += '; @launch kernel=k1_ln_kernel grid=(256,1,1) block=(128,1,1) lds=0\n'
    out += '; @launch kernel=k2_attn_kernel grid=(256,1,1) block=(256,1,1) lds=%d\n' % K2_LDS
    out += '; @launch kernel=k3_proj_kernel grid=(256,1,1) block=(256,1,1) lds=%d\n' % K3_LDS
    out += '; @launch kernel=k4_fin_kernel grid=(640,1,1) block=(256,1,1) lds=0\n'
    out += '.amdgcn_target "amdgcn-amd-amdhsa--gfx950"\n.text\n'
    descs = []
    for f in (k1, k2, k3, k4):
        t, d = f()
        out += t
        descs.append(d)
    out += '.section .rodata,"a"\n'
    for d in descs:
        out += '.p2align 6\n' + d
    dst = sys.argv[1] if len(sys.argv) > 1 else 'cdna_kernels/%s.s' % NAME
    open(dst, 'w').write(out)


if __name__ == '__main__':
    main()
```

```python
import math
import sys
from asmgen import *

NAME = 'recurrent_scan__sliding_block_cached__glu_gated_geglu__prompt'

XF_OFF = 0
F_OFF = 4 << 20
P_OFF = 40 << 20
WS_BYTES = 268435456
LOG2E = 1.4426950408889634
import os
FL_W = os.environ.get('FL_W', '')
FL_X = os.environ.get('FL_X', '')
FL_ST = os.environ.get('FL_ST', '')
FL_PS = os.environ.get('FL_PS', '')
FL_PL = os.environ.get('FL_PL', '')
FL_IN = os.environ.get('FL_IN', '')
_dma0 = dma


def dma(voff, srd, soff=0, off=0, tag=None, flags=''):
    return _dma0(voff, srd, soff, off, tag, FL_W)


def srd(base_s, lo, hi, nrec):
    return [salu('s_mov_b32', s(base_s), lo), salu('s_and_b32', s(base_s + 1), hi, 0xffff),
            salu('s_mov_b32', s(base_s + 2), nrec), salu('s_mov_b32', s(base_s + 3), 0x20000)]


def add64(lo, hi, x):
    return [salu('s_add_u32', s(lo), s(lo), x), salu('s_addc_u32', s(hi), s(hi), 0)]


def kernel_text(name, items, nvgpr, accum, extra_tail=''):
    trace = finalize(items)
    lines = emit(items)
    txt = '.globl %s\n.p2align 8\n.type %s,@function\n%s:\n' % (name, name, name)
    txt += '\n'.join(lines) + '\n' + extra_tail
    desc = '''.amdhsa_kernel %s
  .amdhsa_next_free_vgpr %d
  .amdhsa_next_free_sgpr 102
  .amdhsa_accum_offset %d
  .amdhsa_group_segment_fixed_size 0
  .amdhsa_kernarg_size 96
  .amdhsa_user_sgpr_count 2
  .amdhsa_user_sgpr_kernarg_segment_ptr 1
  .amdhsa_system_sgpr_workgroup_id_x 1
.end_amdhsa_kernel
''' % (name, nvgpr, accum)
    sys.stderr.write('%s: %s\n' % (name, stats(trace)))
    return txt, desc


STAMP = int(__import__('os').environ.get('STAMP', '0'))
STAMP_OFF = 200 << 20


def stamp(i):
    if not STAMP:
        return []
    return [I('s_memtime %s' % s(72 + 2 * i, 2), 'smem', (), regs(s(72 + 2 * i, 2)))]


def stamp_store(n, srdname, wave_s, koff, vt0, vt1, extra=0):
    if not STAMP:
        return []
    out = [waitcnt(vm=0)] + stamp(n - 1) + [waitcnt(lgkm=0)]
    out += [salu('s_lshl_b32', 's100', 's2', 2), salu('s_add_u32', 's100', 's100', wave_s), salu('s_lshl_b32', 's100', 's100', 6),
            salu('s_add_u32', 's100', 's100', STAMP_OFF + koff), valu('v_mov_b32', vt0, 's100')]
    for i in range(n + extra):
        out += [valu('v_mov_b32', vt1, s(72 + 2 * i)), buf_store(vt1, vt0, srdname, 0, 4 * i), nop(1)]
    return out


def rt_begin():
    if not STAMP:
        return []
    return [I('s_memrealtime s[96:97]', 'smem', (), regs('s[96:97]'))]


def rt_end(kidx, srdname, vt):
    if not STAMP:
        return []
    out = [waitcnt(vm=0), I('s_memrealtime s[98:99]', 'smem', (), regs('s[98:99]')), waitcnt(lgkm=0)]
    out += [salu('s_lshl_b32', 's100', 's2', 3), salu('s_add_u32', 's100', 's100', STAMP_OFF + (4 << 20) + kidx * 65536),
            valu('v_mov_b32', v(vt), 's96'), valu('v_mov_b32', v(vt + 1), 's98'), valu('v_mov_b32', v(vt + 2), 's100'),
            buf_store(v(vt, 2), v(vt + 2), srdname)]
    return out


def endpgm():
    return raw('s_endpgm', 'br')


def k1():
    P = []
    P += [scmp('s_cmp_ge_u32', 's2', 256), raw('s_cbranch_scc1 L_k1_end', 'br', rd=['scc'])]
    P += rt_begin()
    P += [sload(s(4, 2), 's[0:1]', 0), sload(s(6, 2), 's[0:1]', 88)]
    P += [valu('v_and_b32', 'v1', 15, 'v0'),
          valu('v_lshrrev_b32', 'v2', 4, 'v0'),
          salu('s_lshl_b32', 's3', 's2', 3),
          valu('v_add_u32', 'v2', 's3', 'v2'),
          valu('v_mul_u32_u24', 'v3', 1280, 'v2'),
          valu('v_lshl_add_u32', 'v3', 'v1', 4, 'v3')]
    P += srd(8, 's4', 's5', 2048 * 1280)
    P += srd(12, 's6', 's7', WS_BYTES)
    X = 8
    for n in range(5):
        P.append(buf_load(v(X + 4 * n, 4), 'v3', s(8, 4), 0, 256 * n, flags=FL_IN))
    P += [valu('v_lshrrev_b32', 'v4', 5, 'v2'),
          salu('s_mov_b32', 's16', 40960),
          valu('v_mul_lo_u32', 'v4', 'v4', 's16'),
          valu('v_lshrrev_b32', 'v5', 1, 'v1'),
          valu('v_lshl_add_u32', 'v4', 'v5', 10, 'v4'),
          valu('v_and_b32', 'v5', 31, 'v2'),
          valu('v_lshl_add_u32', 'v4', 'v5', 4, 'v4'),
          valu('v_and_b32', 'v5', 1, 'v1'),
          valu('v_lshl_add_u32', 'v4', 'v5', 9, 'v4')]
    for n in range(5):
        P.append(salu('s_mov_b32', s(20 + n), XF_OFF + 8192 * n))
    Fv = 32
    for r in range(20):
        P.append(valu('v_lshlrev_b32', v(Fv + 2 * r), 16, v(X + r)))
        P.append(valu('v_and_b32', v(Fv + 2 * r + 1), 0xffff0000, v(X + r)))
    for k in range(4):
        P.append(valu('v_add_f32', v(72 + k), v(Fv + k), v(Fv + 4 + k)))
    for r in range(8, 40):
        P.append(valu('v_add_f32', v(72 + r % 4), v(72 + r % 4), v(Fv + r)))
    P += [valu('v_add_f32', 'v72', 'v72', 'v73'), valu('v_add_f32', 'v74', 'v74', 'v75'), valu('v_add_f32', 'v72', 'v72', 'v74')]

    def row_allreduce(reg, tmp):
        out = []
        for sh in (8, 4, 2, 1):
            out.append(valu('v_add_f32_dpp', tmp, reg, reg, mods='row_ror:%d row_mask:0xf bank_mask:0xf' % sh))
            out.append(valu('v_mov_b32', reg, tmp))
        return out
    P += row_allreduce('v72', 'v73')
    P.append(valu('v_mul_f32', 'v72', 1.0 / 640.0, 'v72'))
    for r in range(40):
        P.append(valu('v_sub_f32', v(80 + r % 8), v(Fv + r), 'v72'))
        if r < 4:
            P.append(valu('v_mul_f32', v(76 + r), v(80 + r % 8), v(80 + r % 8)))
        else:
            P.append(valu('v_fmac_f32', v(76 + r % 4), v(80 + r % 8), v(80 + r % 8)))
    P += [valu('v_add_f32', 'v76', 'v76', 'v77'), valu('v_add_f32', 'v78', 'v78', 'v79'), valu('v_add_f32', 'v76', 'v76', 'v78')]
    P += row_allreduce('v76', 'v73')
    P.append(valu('v_mul_f32', 'v76', 1.0 / 640.0, 'v76'))
    P += [valu('v_cvt_pk_bf16_f32', 'v73', 'v72', 'v76'),
          valu('v_lshlrev_b32', 'v72', 16, 'v73'),
          valu('v_and_b32', 'v76', 0xffff0000, 'v73'),
          valu('v_add_f32', 'v76', 1e-5, 'v76'),
          valu('v_cvt_pk_bf16_f32', 'v76', 'v76', 'v76'),
          valu('v_lshlrev_b32', 'v76', 16, 'v76'),
          valu('v_sqrt_f32', 'v76', 'v76'),
          valu('v_cvt_pk_bf16_f32', 'v76', 'v76', 'v76'),
          valu('v_lshlrev_b32', 'v76', 16, 'v76'),
          valu('v_rcp_f32', 'v77', 'v76')]
    for r in range(20):
        x0, x1 = v(Fv + 2 * r), v(Fv + 2 * r + 1)
        t0, t1, t2, t3 = v(80 + (r % 2) * 4), v(81 + (r % 2) * 4), v(82 + (r % 2) * 4), v(83 + (r % 2) * 4)
        P += [valu('v_sub_f32', x0, x0, 'v72'), valu('v_sub_f32', x1, x1, 'v72'),
              valu('v_cvt_pk_bf16_f32', t0, x0, x1),
              valu('v_lshlrev_b32', x0, 16, t0), valu('v_and_b32', x1, 0xffff0000, t0),
              valu('v_mul_f32', t0, x0, 'v77'), valu('v_mul_f32', t1, x1, 'v77'),
              valu('v_fma_f32', t2, '-' + t0, 'v76', x0), valu('v_fma_f32', t3, '-' + t1, 'v76', x1),
              valu('v_fmac_f32', t0, t2, 'v77'), valu('v_fmac_f32', t1, t3, 'v77'),
              valu('v_cvt_pk_bf16_f32', v(X + r), t0, t1)]
        if r % 4 == 3:
            n = r // 4
            P.append(buf_store(v(X + 4 * n, 4), 'v4', s(12, 4), s(20 + n)))
    P += rt_end(0, s(12, 4), 80)
    P += [label('L_k1_end'), endpgm()]
    return kernel_text('k1_ln_kernel', P, 96, 96)


def lane_tr_part(dst, lane, t0, t1, hh_stride, g1_stride, row_stride):
    out = [valu('v_lshrrev_b32', t0, 5, lane),
           valu('v_mul_u32_u24', dst, hh_stride, t0),
           valu('v_bfe_u32', t0, lane, 2, 2),
           valu('v_mul_u32_u24', t0, row_stride, t0),
           valu('v_add_u32', dst, dst, t0),
           valu('v_bfe_u32', t0, lane, 4, 1),
           valu('v_mul_u32_u24', t0, g1_stride, t0),
           valu('v_add_u32', dst, dst, t0),
           valu('v_and_b32', t0, 1, lane),
           valu('v_lshlrev_b32', t0, 4, t0),
           valu('v_bfe_u32', t1, lane, 1, 1),
           valu('v_lshl_add_u32', t0, t1, 3, t0),
           valu('v_add_u32', dst, dst, t0)]
    return out


SLOT1 = 37120
GU_OFF = 24576
UP_REL = 6272
UNIT = 24576
RING2 = 1024
K2_LDS = 148480
THRESH = float(__import__('os').environ.get('THRESH', '64'))
EXP = __import__('os').environ.get('EXP', '')


def k2():
    P = []
    S_WQ, S_GU, S_K, S_V, S_WS = 4, 8, 12, 16, 20
    sWAVE, sHEAD, sQB = 's24', 's25', 's26'
    sT = ['s27', 's28', 's29', 's30', 's31']
    sBASE = 's42'
    sKROW = 's43'
    sGROW = 's44'
    sXOFF = 's45'
    sCNT = 's46'
    sWM0 = 's47'
    sGM0 = 's48'
    sC = 's49'
    sRD = 's50'
    sWR = 's51'
    sKT = 's52'
    sVT = 's53'
    sPEND = 's54'
    sKM0 = 's55'
    sVM0 = 's56'
    sFO = ['s57', 's58', 's59']
    sFH = 's62'
    sTHR = 's63'
    sK0, sK1 = 's64', 's65'
    LINK = 's[60:61]'

    vL = 'v192'
    vDQ = [v(193 + i) for i in range(6)]
    vDG = [v(199 + i) for i in range(3)]
    vAqL, vAgL, vAq, vAg = 'v202', 'v203', 'v204', 'v205'
    vX = ['v206', 'v207']
    vDK, vDVa, vDVb = 'v208', 'v209', 'v210'
    vKL = 'v211'
    vK = [v(212 + i) for i in range(4)]
    vV = 'v216'
    vM = ['v217', 'v218']
    vLs = ['v219', 'v220']
    vF = ['v221', 'v222']
    vFO = ['v223', 'v224']
    vMX = ['v225', 'v226']
    vT = [v(227 + i) for i in range(29)]

    def qacc(t, b):
        return v(16 * (2 * t + b), 16)

    def qfrag(b, ks):
        t, u = ks // 2, ks % 2
        return v(8 * (2 * t + b) + 4 * u, 4)

    def guacc(j, b):
        return a(16 * (2 * j + b), 16)

    def xb(kslot, b):
        return a(96 + 8 * kslot + 4 * b, 4)

    def afrag1(F):
        return 160 + 4 * (F % 12)

    def afrag2(F):
        return 208 + 4 * (F % 12)

    def sacc(par, b):
        return 96 + 32 * par + 16 * b

    def pfrag(par, b, u):
        return v(160 + 16 * par + 8 * b + 4 * u, 4)

    def oacc(t, b):
        return 16 * (2 * t + b)

    P += [scmp('s_cmp_ge_u32', 's2', 256), raw('s_cbranch_scc1 L_k2_end', 'br', rd=['scc'])]
    P += stamp(0) + rt_begin()
    P += [sload(s(32, 4), 's[0:1]', 8), sload(s(36, 2), 's[0:1]', 24), sload(s(68, 4), 's[0:1]', 48), sload(s(40, 2), 's[0:1]', 88)]
    P += [valu('v_lshrrev_b32', 'v1', 6, 'v0'), valu('v_and_b32', vL, 63, 'v0'), readfirstlane(sWAVE, 'v1')]
    P += [salu('s_and_b32', sT[0], 's2', 7), salu('s_lshl_b32', sT[0], sT[0], 2),
          salu('s_lshr_b32', sT[1], 's2', 3), salu('s_and_b32', sT[1], sT[1], 3),
          salu('s_add_u32', sHEAD, sT[0], sT[1]), salu('s_lshr_b32', sQB, 's2', 5)]
    P += [salu('s_lshl_b32', sT[0], sQB, 3), salu('s_lshl_b32', sT[1], sWAVE, 1), salu('s_add_u32', sT[0], sT[0], sT[1]),
          salu('s_mul_i32', sT[1], sT[0], 40960), salu('s_mul_i32', sT[2], sT[0], 491520),
          valu('v_lshlrev_b32', 'v1', 4, vL),
          valu('v_add_u32', vX[0], sT[1], 'v1'), valu('v_add_u32', vX[1], 40960, vX[0]),
          valu('v_add_u32', vFO[0], sT[2], 'v1'), valu('v_add_u32', vFO[1], 491520, vFO[0])]
    P += [valu('v_bfe_u32', 'v2', vL, 2, 2),
          valu('v_and_b32', 'v3', 3, vL), valu('v_lshlrev_b32', 'v3', 4, 'v3'),
          valu('v_lshrrev_b32', 'v4', 4, vL), valu('v_lshl_add_u32', 'v4', 'v4', 6, 'v3'),
          valu('v_bfe_u32', 'v5', vL, 4, 1), valu('v_lshl_add_u32', 'v5', 'v5', 6, 'v3'), valu('v_add_u32', 'v5', 256, 'v5'),
          valu('v_lshrrev_b32', 'v6', 5, vL), valu('v_lshl_add_u32', 'v6', 'v6', 2, 'v2'),
          salu('s_lshl_b32', sT[0], sWAVE, 4),
          valu('v_add_u32', 'v7', sT[0], 'v2'), valu('v_add_u32', 'v8', sT[0], 'v6'),
          valu('v_mul_u32_u24', 'v7', 12288, 'v7'), valu('v_mul_u32_u24', 'v8', 12288, 'v8'),
          valu('v_add_u32', vDQ[0], 'v7', 'v4'), valu('v_add_u32', vDQ[2], 'v8', 'v5'),
          valu('v_add_u32', vDQ[1], 4 * 12288, vDQ[0]), valu('v_add_u32', vDQ[3], 8 * 12288, vDQ[0]),
          valu('v_add_u32', vDQ[4], 12 * 12288, vDQ[0]), valu('v_add_u32', vDQ[5], 8 * 12288, vDQ[2])]
    P += [salu('s_lshl_b32', sT[0], sWAVE, 3),
          valu('v_add_u32', 'v7', sT[0], 'v2'), valu('v_add_u32', 'v8', sT[0], 'v6'),
          valu('v_mul_u32_u24', 'v7', 384, 'v7'), valu('v_mul_u32_u24', 'v8', 384, 'v8'),
          valu('v_add_u32', vDVa, 'v7', 'v4'), valu('v_add_u32', vDVb, 'v8', 'v5')]
    P += [valu('v_lshrrev_b32', 'v7', 3, vL), valu('v_add_u32', 'v7', sT[0], 'v7'),
          valu('v_bfe_u32', 'v8', 'v7', 1, 3), valu('v_and_b32', 'v9', 7, vL), valu('v_xor_b32', 'v8', 'v8', 'v9'),
          valu('v_mul_u32_u24', 'v7', 384, 'v7'), valu('v_lshl_add_u32', vDK, 'v8', 4, 'v7')]
    P += [salu('s_and_b32', sT[0], sWAVE, 1), salu('s_mul_i32', sT[0], sT[0], 192), salu('s_mov_b32', sT[1], 43691)]
    for n in range(3):
        P += [valu('v_add_u32', 'v7', sT[0], vL), valu('v_add_u32', 'v7', 64 * n, 'v7'),
              valu('v_mul_u32_u24', 'v8', sT[1], 'v7'), valu('v_lshrrev_b32', 'v8', 18, 'v8'),
              valu('v_mul_u32_u24', 'v9', 6, 'v8'), valu('v_sub_u32', 'v9', 'v7', 'v9'),
              valu('v_mul_u32_u24', 'v8', 3072, 'v8'), valu('v_lshl_add_u32', vDG[n], 'v9', 4, 'v8')]
    P += [salu('s_mul_i32', sT[0], sHEAD, 384)]
    P += add64(36, 37, sT[0])
    P += [salu('s_sub_u32', sT[1], 640 * 12288, sT[0])]
    P += srd(S_WQ, 's36', 's37', sT[1])
    P += srd(S_WS, 's40', 's41', WS_BYTES)
    P += [scmp('s_cmp_lt_u32', sWAVE, 2), salu('s_cselect_b32', 's68', 's68', 's70'), salu('s_cselect_b32', 's69', 's69', 's71'),
          salu('s_mul_i32', sT[0], sHEAD, 96)]
    P += add64(68, 69, sT[0])
    P += [salu('s_sub_u32', sT[1], 640 * 3072, sT[0])]
    P += srd(S_GU, 's68', 's69', sT[1])
    P += [salu('s_mul_i32', sT[0], sHEAD, 786432), salu('s_add_u32', sT[0], sT[0], 589824)]
    P += add64(32, 33, sT[0]) + add64(34, 35, sT[0])
    P += srd(S_K, 's32', 's33', 196608) + srd(S_V, 's34', 's35', 196608)
    P += [salu('s_mul_i32', sWM0, sWAVE, 6144),
          salu('s_lshr_b32', sT[0], sWAVE, 1), salu('s_mul_i32', sT[0], sT[0], UP_REL),
          salu('s_and_b32', sT[1], sWAVE, 1), salu('s_mul_i32', sT[1], sT[1], 3072),
          salu('s_add_u32', sGM0, sT[0], sT[1]), salu('s_add_u32', sGM0, sGM0, GU_OFF),
          salu('s_lshl_b32', sKM0, sWAVE, 10),
          salu('s_mul_i32', sVM0, sWAVE, 3072), salu('s_add_u32', sVM0, sVM0, 12288)]
    P += [salu('s_mov_b32', sKROW, 0), salu('s_mov_b32', sGROW, 0), salu('s_mov_b32', sXOFF, XF_OFF)]

    def dma_proj(slot_s, slot_imm, tag):
        g = []
        for n in range(6):
            g.append([salu('s_add_u32', sT[3], sWM0, slot_imm + 1024 * n) if slot_s is None else
                      salu('s_add_u32', sT[3], sWM0, slot_s),
                      ] + ([] if slot_s is None else [salu('s_add_u32', sT[3], sT[3], slot_imm + 1024 * n)]) +
                     [salu('s_mov_b32', 'm0', sT[3]), dma(vDQ[n], s(S_WQ, 4), sKROW, tag=tag)])
        for n in range(3):
            g.append([salu('s_add_u32', sT[3], sGM0, slot_imm + 1024 * n) if slot_s is None else
                      salu('s_add_u32', sT[3], sGM0, slot_s),
                      ] + ([] if slot_s is None else [salu('s_add_u32', sT[3], sT[3], slot_imm + 1024 * n)]) +
                     [salu('s_mov_b32', 'm0', sT[3]), dma(vDG[n], s(S_GU, 4), sGROW, tag=tag)])
        g.append([salu('s_add_u32', sKROW, sKROW, 64 * 12288), salu('s_add_u32', sGROW, sGROW, 64 * 3072)])
        return g

    def xb_load(kslot, sp):
        return [buf_load(xb(kslot, b), vX[b], s(S_WS, 4), sXOFF, 1024 * sp, flags=FL_X) for b in range(2)]

    P += xb_load(0, 0)
    P += dma_proj(None, 0, ('P', 0))
    P += xb_load(1, 1) + xb_load(2, 2) + xb_load(3, 3)
    P.append(salu('s_add_u32', sXOFF, sXOFF, 4096))
    P += dma_proj(None, SLOT1, ('P', 1))
    for sp in range(4):
        P += xb_load(4 + sp, sp)
    P.append(salu('s_add_u32', sXOFF, sXOFF, 4096))
    P += lane_tr_part(vAqL, vL, 'v1', 'v2', 3072, 32, 64)
    P += lane_tr_part(vAgL, vL, 'v1', 'v2', 8 * 96, UP_REL, 96)
    P += [valu('v_and_b32', 'v1', 19, vL),
          valu('v_bfe_u32', 'v2', vL, 2, 1), valu('v_lshl_add_u32', 'v1', 'v2', 3, 'v1'),
          valu('v_bfe_u32', 'v2', vL, 3, 1), valu('v_lshl_add_u32', 'v1', 'v2', 2, 'v1'),
          valu('v_bfe_u32', 'v2', 'v1', 1, 3), valu('v_lshrrev_b32', 'v3', 5, vL), valu('v_xor_b32', 'v2', 'v2', 'v3'),
          valu('v_lshlrev_b32', 'v1', 7, 'v1'), valu('v_lshl_add_u32', vKL, 'v2', 4, 'v1')]
    P += [salu('s_mov_b32', sC, float(LOG2E / math.sqrt(192.0))), salu('s_mov_b32', sTHR, THRESH),
          salu('s_mov_b32', sPEND, 0),
          salu('s_mul_i32', sT[0], sHEAD, 12 * 1024), salu('s_add_u32', sFO[0], sT[0], F_OFF),
          salu('s_add_u32', sFO[1], sFO[0], 4096), salu('s_add_u32', sFO[2], sFO[0], 8192),
          salu('s_mul_i32', sT[0], sHEAD, 3 * 1024), salu('s_add_u32', sFH, sT[0], F_OFF + 384 * 1024),
          salu('s_mov_b32', sKT, 0), salu('s_mov_b32', sVT, 0),
          salu('s_mov_b32', sK0, float(-2.0 * math.sqrt(2.0 / math.pi) * LOG2E)),
          salu('s_mov_b32', sK1, float(-2.0 * math.sqrt(2.0 / math.pi) * LOG2E * 0.044715))]
    for b in range(2):
        P += [valu('v_mov_b32', vM[b], -3.0e38), valu('v_mov_b32', vLs[b], 0)]
    for r in range(192):
        P.append(valu('v_mov_b32', v(r), 0))
    for r in range(96):
        P.append(valu('v_accvgpr_write_b32', a(r), 0))
    P += [salu('s_mov_b32', sBASE, 0)]

    D1 = 6

    def rd1(F):
        sp, f = F // 9, F % 9
        d = afrag1(F)
        out = []
        for q in range(2):
            if f < 6:
                off = sp * 6144 + (q * 1024 + f * 256 if f < 4 else 2048 + q * 512 + (f - 4) * 256)
                out.append(ds_read('ds_read_b64_tr_b16', a(d + 2 * q, 2), vAq, off))
            else:
                j = f - 6
                off = GU_OFF + (16 * sp + 4 * q) * 96 + 32 * j
                out.append(ds_read('ds_read_b64_tr_b16', a(d + 2 * q, 2), vAg, off))
        return out

    def set_rd1(slot_s, imm):
        if slot_s is None:
            return [valu('v_add_u32', vAq, imm, vAqL), valu('v_add_u32', vAg, imm, vAgL)]
        return [salu('s_add_u32', sT[4], slot_s, imm), valu('v_add_u32', vAq, sT[4], vAqL), valu('v_add_u32', vAg, sT[4], vAgL)]

    def dma_unit(tag, doK=True, doV=True, base_imm=None):
        g = []
        if doK:
            for ch in range(3):
                pre = [salu('s_add_u32', sT[3], sKM0, sWR), salu('s_add_u32', 'm0', sT[3], ch * 4096 - ch * 128)]
                g.append(pre + [dma(vDK, s(S_K, 4), sKT, ch * 128, tag=tag)])
            g.append([salu('s_add_u32', sKT, sKT, 12288)])
        if doV:
            g.append([salu('s_add_u32', sT[3], sVM0, sWR), salu('s_mov_b32', 'm0', sT[3]), dma(vDVa, s(S_V, 4), sVT, tag=tag)])
            g.append([salu('s_add_u32', sT[3], sVM0, sWR), salu('s_sub_u32', 'm0', sT[3], 512), dma(vDVa, s(S_V, 4), sVT, 1536, tag=tag)])
            g.append([salu('s_add_u32', sT[3], sVM0, sWR), salu('s_add_u32', 'm0', sT[3], 2048), dma(vDVb, s(S_V, 4), sVT, tag=tag)])
            g.append([salu('s_add_u32', sVT, sVT, 12288)])
        g.append([salu('s_add_u32', sWR, sWR, UNIT), scmp('s_cmp_ge_u32', sWR, RING2 + 6 * UNIT),
                  salu('s_cselect_b32', sWR, RING2, sWR)])
        return g

    def set_rd2():
        return [salu('s_add_u32', sRD, sRD, UNIT), scmp('s_cmp_ge_u32', sRD, RING2 + 6 * UNIT), salu('s_cselect_b32', sRD, RING2, sRD),
                valu('v_add_u32', vK[0], sRD, vKL), valu('v_add_u32', vV, sRD, vAqL),
                valu('v_xor_b32', vK[1], 32, vK[0]), valu('v_xor_b32', vK[2], 64, vK[0]), valu('v_xor_b32', vK[3], 96, vK[0])]

    def rdK(F, ks):
        return [ds_read('ds_read_b128', a(afrag2(F), 4), vK[ks & 3], (ks >> 2) * 4096)]

    def rdV(F, u, t):
        d = afrag2(F)
        out = []
        for q in range(2):
            off = 12288 + u * 6144 + (q * 1024 + t * 256 if t < 4 else 2048 + q * 512 + (t - 4) * 256)
            out.append(ds_read('ds_read_b64_tr_b16', a(d + 2 * q, 2), vV, off))
        return out

    P += [barrier(waitjob=('P', 0))]
    P += stamp(1)
    P += set_rd1(None, 0)
    for F in range(D1):
        P += rd1(F)

    def stage1(par, jobtag_next, dma_groups, do_xb, nxt_reads, nxt_setup, extra_fill=()):
        M = []
        for m in range(72):
            sp, f, b = m // 18, (m % 18) // 2, m % 2
            F = 9 * sp + f
            A = a(afrag1(F), 4)
            B = xb(4 * par + sp, b)
            D = qacc(f, b) if f < 6 else guacc(f - 6, b)
            M.append(mfma(D, A, B))
        fill = []
        for F in range(D1, 36):
            for k, ins in enumerate(rd1(F)):
                fill.append((2 * (F - D1) + k + 0.1, ins))
        pb = 2 * (36 - D1)
        fill.append((pb - 0.5, barrier(waitjob=jobtag_next)))
        for ins in nxt_setup:
            fill.append((pb - 0.4, ins))
        for F in range(D1):
            for k, ins in enumerate(nxt_reads(F)):
                fill.append((pb + 2 * F + k + 0.1, ins))
        ng = len(dma_groups)
        for n, g in enumerate(dma_groups):
            for ins in g:
                fill.append((1 + n * (50.0 / max(ng, 1)) + 0.5, ins))
        if do_xb:
            for sp in range(4):
                for ins in xb_load(4 * par + sp, sp):
                    fill.append((18 * sp + 17.6, ins))
            fill.append((71.7, salu('s_add_u32', sXOFF, sXOFF, 4096)))
        fill += list(extra_fill)
        return interleave(M, fill)

    body = []
    body += [salu('s_xor_b32', sT[2], sBASE, 2 * SLOT1)]
    body += stage1(0, lambda it: ('P', 2 * it + 1), dma_proj(sT[2], 0, lambda it: ('P', 2 * it + 2)), True, rd1, set_rd1(sBASE, SLOT1))
    body += stage1(1, lambda it: ('P', 2 * it + 2), dma_proj(sT[2], SLOT1, lambda it: ('P', 2 * it + 3)), True, rd1, set_rd1(sT[2], 0))
    body += [salu('s_mov_b32', sBASE, sT[2]),
             salu('s_sub_u32', sCNT, sCNT, 1), scmp('s_cmp_lg_u32', sCNT, 0), raw('s_cbranch_scc1 L_k2_p1', 'br', rd=['scc'])]
    P.append(salu('s_mov_b32', sCNT, 4))
    P.append(Loop('L_k2_p1', 4, body))
    P += stamp(2)
    P += [salu('s_mov_b32', sWR, RING2 + 3 * UNIT), salu('s_mov_b32', sRD, RING2 + 2 * UNIT)]
    P += stage1(0, ('P', 9), dma_unit(('U', 0), True, False), False, rd1, set_rd1(None, SLOT1))
    D2 = 6
    P += stage1(1, ('U', 0), dma_unit(('U', 1), True, False) + dma_unit(('U', 2)), False,
                lambda F: rdK(F, F), set_rd2(),
                extra_fill=[(54 + k // 8 + 4 + 0.6 + 0.01 * (k % 8), valu('v_cvt_pk_bf16_f32', v(k), v(2 * k), v(2 * k + 1))) for k in range(96)])

    def q_cvt():
        return [valu('v_cvt_pk_bf16_f32', v(k), v(2 * k), v(2 * k + 1)) for k in range(96)]

    def gu_math():
        out = []
        for j in range(3):
            for b in range(2):
                base = 16 * (2 * j + b)
                hreg = 160 + 4 * ((2 * j + b) % 4)
                hreg = 176 + 4 * ((2 * j + b) % 4)
                for e2 in range(4):
                    tt = []
                    for k in range(2):
                        e = 2 * e2 + k
                        g, u_, t = vT[3 * k + 6 * (e2 % 2)], vT[3 * k + 1 + 6 * (e2 % 2)], vT[3 * k + 2 + 6 * (e2 % 2)]
                        tt.append((g, u_, t))
                        out += [valu('v_accvgpr_read_b32', g, a(base + e)), valu('v_accvgpr_read_b32', u_, a(base + 8 + e))]
                    for g, u_, t in tt:
                        out += [valu('v_mul_f32', t, g, g)]
                    for g, u_, t in tt:
                        out += [valu('v_fma_f32', t, t, sK1, sK0) if False else valu('v_mul_f32', t, sK1, t)]
                    for g, u_, t in tt:
                        out += [valu('v_add_f32', t, sK0, t)]
                    for g, u_, t in tt:
                        out += [valu('v_mul_f32', t, t, g)]
                    for g, u_, t in tt:
                        out += [valu('v_exp_f32', t, t)]
                    for g, u_, t in tt:
                        out += [valu('v_mul_f32', g, g, u_)]
                    for g, u_, t in tt:
                        out += [valu('v_add_f32', t, 1.0, t)]
                    for g, u_, t in tt:
                        out += [valu('v_rcp_f32', t, t)]
                    for k in range(2):
                        e = 2 * e2 + k
                        out += [valu('v_accvgpr_write_b32', a(base + e), 0), valu('v_accvgpr_write_b32', a(base + 8 + e), 0)]
                    for g, u_, t in tt:
                        out += [valu('v_mul_f32', g, g, t)]
                    out += [valu('v_cvt_pk_bf16_f32', v(hreg + e2), tt[0][0], tt[1][0])]
                out += [buf_store(v(hreg, 4), vFO[b], s(S_WS, 4), sFH, 1024 * j, flags=FL_ST)]
        return out

    def softmax_head(par):
        out = []
        for b in range(2):
            S = sacc(par, b)
            out.append(valu('v_max3_f32', vMX[b], v(S), v(S + 1), v(S + 2)))
            for k in range(3, 15, 2):
                out.append(valu('v_max3_f32', vMX[b], vMX[b], v(S + k), v(S + k + 1)))
            out.append(valu('v_max_f32', vMX[b], vMX[b], v(S + 15)))
        out += [valu('v_fma_f32', vT[12], vMX[0], sC, '-' + vM[0]), valu('v_fma_f32', vT[13], vMX[1], sC, '-' + vM[1]),
                valu('v_max_f32', vT[12], vT[12], vT[13]),
                vcmp('v_cmp_lt_f32', 'vcc', sTHR, vT[12])]
        lab = 'L_k2_sk%d' % softmax_head.n
        softmax_head.n += 1
        call = [raw('s_cbranch_vccz %s' % lab, 'br', rd=['vcc']),
                raw('s_call_b64 %s, L_k2_newmax' % LINK, 'br', rd=[vMX[0], vMX[1], vM[0], vM[1], vLs[0], vLs[1]],
                    wr=[vM[0], vM[1], vLs[0], vLs[1], vF[0], vF[1], LINK, sPEND, vT[12], vT[13], vT[14], vT[15]]),
                label(lab)]
        out.append(call)
        return out
    softmax_head.n = 0

    def softmax_body(par):
        out = []
        for b in range(2):
            S = sacc(par, b)
            for u in range(2):
                for k2_ in range(4):
                    r0, r1 = S + 8 * u + 2 * k2_, S + 8 * u + 2 * k2_ + 1
                    out += [valu('v_fma_f32', v(r0), v(r0), sC, '-' + vM[b]), valu('v_fma_f32', v(r1), v(r1), sC, '-' + vM[b]),
                            valu('v_exp_f32', v(r0), v(r0)), valu('v_exp_f32', v(r1), v(r1))]
                    pr = 160 + 16 * par + 8 * b + 4 * u + k2_
                    out += [('late', [valu('v_add_f32', vLs[b], vLs[b], v(r0)),
                                      valu('v_cvt_pk_bf16_f32', v(pr), v(r0), v(r1)),
                                      valu('v_add_f32', vLs[b], vLs[b], v(r1))])]
        res = []
        pend = []
        for x in out:
            if isinstance(x, tuple):
                pend.append(x[1])
                if len(pend) > 1:
                    res += pend.pop(0)
            else:
                res.append(x)
        for p_ in pend:
            res += p_
        return res

    def rescale_check():
        lab = 'L_k2_rs%d' % rescale_check.n
        rescale_check.n += 1
        return [scmp('s_cmp_eq_u32', sPEND, 0), raw('s_cbranch_scc1 %s' % lab, 'br', rd=['scc']),
                raw('s_call_b64 %s, L_k2_rescale' % LINK, 'br', rd=[vF[0], vF[1], a(0, 192)], wr=[LINK, sPEND, a(0, 192), vT[16], vT[17], vT[18], vT[19]]),
                label(lab)]
    rescale_check.n = 0

    def iter2(par, doQK, doSM, doPV, nextQK, nextPV, jobnext, dma_groups, extra=None, pre=None, resc=True, epi=None):
        M = []
        frs = []
        if doQK:
            for ks in range(12):
                frs.append(('K', ks))
        if doPV:
            for u in range(2):
                for t in range(6):
                    frs.append(('V', u, t))
        nf = len(frs)
        for F, fr in enumerate(frs):
            A = a(afrag2(F), 4)
            for b in range(2):
                if fr[0] == 'K':
                    ks = fr[1]
                    D = v(sacc(par ^ 1, b), 16)
                    M.append(mfma(D, A, qfrag(b, ks), 0 if ks == 0 else D))
                else:
                    _, u, t = fr
                    D = a(oacc(t, b), 16)
                    M.append(mfma(D, A, pfrag(par ^ 1, b, u)))
        nM = len(M)

        def rd(F, fr):
            return rdK(F, fr[1]) if fr[0] == 'K' else rdV(F, fr[1], fr[2])
        fill = []
        for F in range(D2, nf):
            for k, ins in enumerate(rd(F, frs[F])):
                fill.append((2 * (F - D2) + k + 0.1, ins))
        if jobnext is not None:
            pb = 2 * (nf - D2)
            fill.append((pb - 0.5, barrier(waitjob=jobnext)))
            for ins in set_rd2():
                fill.append((pb - 0.4, ins))
            nfr = [('K', ks) for ks in range(12)] if nextQK else [('V', 0, t) for t in range(6)]
            for F in range(D2):
                for k, ins in enumerate(rd(nf + F, nfr[F])):
                    fill.append((pb + 2 * F + k + 0.1, ins))
        ng = len(dma_groups)
        for n, g in enumerate(dma_groups):
            for ins in g:
                fill.append((1 + n * ((nM - 14.0) / max(ng, 1)) + 0.5, ins))
        if pre:
            fill += pre
        vs = []
        if doSM:
            vs += softmax_head(par) + softmax_body(par)
        if extra:
            vs = extra(vs)
        if vs:
            fill += spread(vs, 0.2, nM - 0.5)
        if epi:
            fill += epi
        out = interleave(M, fill)
        if doSM and resc:
            out += rescale_check()
        return out

    pre = []
    P += stamp(3)
    gm = gu_math()
    zero2 = [valu('v_accvgpr_write_b32', a(r), 0) for r in range(96, 192)]
    h1 = len(gm) // 3
    P += iter2(1, True, False, False, True, False, ('U', 1), dma_unit(('U', 3)), extra=lambda vs: gm[:h1], pre=pre)
    P += iter2(0, True, True, False, True, True, ('U', 2), dma_unit(('U', 4)) + dma_unit(('U', 5)),
               extra=lambda vs: gm[h1:] + zero2 + vs, resc=False)
    P.append(salu('s_mov_b32', sPEND, 0))
    P += stamp(4)
    body = []
    body += iter2(1, True, True, True, True, True, lambda it: ('U', 2 * it + 3), dma_unit(lambda it: ('U', 2 * it + 6)))
    body += iter2(0, True, True, True, True, True, lambda it: ('U', 2 * it + 4), dma_unit(lambda it: ('U', 2 * it + 7)))
    body += [salu('s_sub_u32', sCNT, sCNT, 1), scmp('s_cmp_lg_u32', sCNT, 0), raw('s_cbranch_scc1 L_k2_p2', 'br', rd=['scc'])]
    P.append(salu('s_mov_b32', sCNT, 7))
    P.append(Loop('L_k2_p2', 7, body))
    P += stamp(5)
    for F in range(D2):
        P += rdV(F, 0, F)
    P += iter2(1, False, True, True, False, True, ('U', 17), [])
    P += iter2(0, False, False, True, False, False, None, [])
    P += stamp(6)
    for b in range(2):
        P += [valu('v_mov_b32', vT[0], vLs[b]), permlane32_swap(vT[0], vLs[b])]
        P += [valu('v_add_f32', vLs[b], vLs[b], vT[0]), valu('v_rcp_f32', vLs[b], vLs[b])]
    n = 0
    for t in range(6):
        for b in range(2):
            for u in range(2):
                base = oacc(t, b) + 8 * u
                tmp = 96 + 16 * (n % 4)
                n += 1
                for e in range(8):
                    P.append(valu('v_accvgpr_read_b32', v(tmp + e), a(base + e)))
                for e in range(8):
                    P.append(valu('v_mul_f32', v(tmp + e), v(tmp + e), vLs[b]))
                for e in range(4):
                    P.append(valu('v_cvt_pk_bf16_f32', v(tmp + 8 + e), v(tmp + 2 * e), v(tmp + 2 * e + 1)))
                ks = 2 * t + u
                P.append(buf_store(v(tmp + 8, 4), vFO[b], s(S_WS, 4), sFO[ks // 4], 1024 * (ks % 4), flags=FL_ST))
    P += stamp(7)
    P += stamp_store(9, s(S_WS, 4), sWAVE, 0, vT[0], vT[1])
    P += rt_end(1, s(S_WS, 4), 230)
    P += [label('L_k2_end'), endpgm()]

    sub = []
    sub.append('L_k2_newmax:')
    sub.append('  s_nop 4')
    for b in range(2):
        t0, t1 = vT[12 + 2 * b], vT[13 + 2 * b]
        sub += ['  v_mov_b32 %s, %s' % (t0, vMX[b]),
                '  v_mov_b32 %s, %s' % (t1, vMX[b]),
                '  s_nop 1',
                '  v_permlane32_swap_b32 %s, %s' % (t0, t1),
                '  s_nop 1',
                '  v_max_f32 %s, %s, %s' % (t0, t0, t1),
                '  v_mul_f32 %s, %s, %s' % (t0, sC, t0),
                '  v_max_f32 %s, %s, %s' % (t0, t0, vM[b]),
                '  v_sub_f32 %s, %s, %s' % (t1, vM[b], t0),
                '  v_exp_f32 %s, %s' % (vF[b], t1),
                '  v_mov_b32 %s, %s' % (vM[b], t0),
                '  s_nop 1',
                '  v_mul_f32 %s, %s, %s' % (vLs[b], vLs[b], vF[b])]
    sub += ['  s_mov_b32 %s, 1' % sPEND, '  s_nop 4', '  s_setpc_b64 %s' % LINK]
    sub.append('L_k2_rescale:')
    sub.append('  s_nop 15')
    for t in range(6):
        for b in range(2):
            for r4 in range(4):
                base = oacc(t, b) + 4 * r4
                for e in range(4):
                    sub.append('  v_accvgpr_read_b32 %s, a%d' % (vT[16 + e], base + e))
                for e in range(4):
                    sub.append('  v_mul_f32 %s, %s, %s' % (vT[16 + e], vT[16 + e], vF[b]))
                for e in range(4):
                    sub.append('  v_accvgpr_write_b32 a%d, %s' % (base + e, vT[16 + e]))
    sub += ['  s_mov_b32 %s, 0' % sPEND, '  s_nop 4', '  s_setpc_b64 %s' % LINK]
    return kernel_text('k2_attn_kernel', P, 512, 256, '\n'.join(sub) + '\n')


K3_SLOT = 20480
K3_NSLOT = 6
K3_LDS = K3_SLOT * K3_NSLOT


def k3():
    P = []
    S_W, S_WS = 4, 8
    sWAVE, sQB, sCT, sCH = 's24', 's25', 's26', 's27'
    sT = ['s28', 's29', 's30', 's31', 's32']
    sROW, sFOFF, sCNT, sRD, sWR, sWM0 = 's42', 's43', 's44', 's45', 's46', 's47'
    sPO = 's48'
    vL = 'v192'
    vD = [v(193 + i) for i in range(5)]
    vA0L, vA1L, vA0, vA1 = 'v198', 'v199', 'v200', 'v201'
    vX = ['v202', 'v203']
    vPO = ['v204', 'v205']

    def acc(t, b):
        return v(16 * (2 * t + b), 16)

    def fb(kslot, b):
        return a(8 * kslot + 4 * b, 4)

    def afr(F):
        return 128 + 4 * (F % 20)

    P += [scmp('s_cmp_ge_u32', 's2', 256), raw('s_cbranch_scc1 L_k3_end', 'br', rd=['scc'])]
    P += stamp(0) + rt_begin()
    if STAMP:
        P.append(I('s_memrealtime s[82:83]', 'smem', (), regs('s[82:83]')))
    P += [sload(s(34, 2), 's[0:1]', 32), sload(s(36, 2), 's[0:1]', 64), sload(s(40, 2), 's[0:1]', 88)]
    P += [valu('v_lshrrev_b32', 'v1', 6, 'v0'), valu('v_and_b32', vL, 63, 'v0'), readfirstlane(sWAVE, 'v1')]
    P += [salu('s_and_b32', sCH, 's2', 7), salu('s_lshr_b32', sT[0], 's2', 3), salu('s_and_b32', sCT, sT[0], 3),
          salu('s_lshr_b32', sQB, 's2', 5)]
    P += [salu('s_lshl_b32', sT[0], sCH, 6), salu('s_mul_i32', sT[1], sCH, 48), salu('s_add_u32', sT[1], sT[1], 384 - 288),
          scmp('s_cmp_lt_u32', sCH, 6), salu('s_cselect_b32', sT[0], sT[0], sT[1]),
          salu('s_cselect_b32', sCNT, 4, 3)]
    P += [salu('s_lshl_b32', sFOFF, sT[0], 10), salu('s_add_u32', sFOFF, sFOFF, F_OFF)]
    P += [salu('s_lshl_b32', sT[1], sQB, 3), salu('s_lshl_b32', sT[2], sWAVE, 1), salu('s_add_u32', sT[1], sT[1], sT[2]),
          salu('s_mul_i32', sT[2], sT[1], 491520),
          valu('v_lshlrev_b32', 'v1', 4, vL),
          valu('v_add_u32', vX[0], sT[2], 'v1'), valu('v_add_u32', vX[1], 491520, vX[0])]
    P += [salu('s_lshl_b32', sT[2], sCH, 6), salu('s_add_u32', sT[2], sT[2], sT[1]), salu('s_lshl_b32', sT[2], sT[2], 2),
          salu('s_add_u32', sT[2], sT[2], sCT), salu('s_mul_i32', sT[2], sT[2], 20480), salu('s_add_u32', sT[2], sT[2], P_OFF),
          valu('v_add_u32', vPO[0], sT[2], 'v1'), valu('v_add_u32', vPO[1], 4 * 20480, vPO[0])]
    P += [scmp('s_cmp_lt_u32', sCH, 6), salu('s_cselect_b32', 's34', 's34', 's36'), salu('s_cselect_b32', 's35', 's35', 's37'),
          salu('s_cselect_b32', sT[2], 0, 384), salu('s_cselect_b32', sT[3], 4, 1), salu('s_mul_i32', sT[3], sT[3], 1536 * 1280),
          salu('s_sub_u32', sT[2], sT[0], sT[2]), salu('s_mul_i32', sT[2], sT[2], 16 * 1280),
          salu('s_mul_i32', sT[4], sCT, 320), salu('s_add_u32', sT[2], sT[2], sT[4]),
          salu('s_sub_u32', sT[3], sT[3], sT[2])]
    P += add64(34, 35, sT[2])
    P += srd(S_W, 's34', 's35', sT[3])
    P += srd(S_WS, 's40', 's41', WS_BYTES)
    P += [valu('v_bfe_u32', 'v2', vL, 2, 2),
          valu('v_and_b32', 'v3', 3, vL), valu('v_lshlrev_b32', 'v3', 4, 'v3'),
          valu('v_lshrrev_b32', 'v4', 4, vL), valu('v_lshl_add_u32', 'v5', 'v4', 6, 'v3'),
          salu('s_lshl_b32', sT[0], sWAVE, 4),
          valu('v_add_u32', 'v6', sT[0], 'v2'), valu('v_mul_u32_u24', 'v7', 1280, 'v6'), valu('v_add_u32', vD[0], 'v7', 'v5'),
          valu('v_add_u32', vD[1], 4 * 1280, vD[0]), valu('v_add_u32', vD[2], 8 * 1280, vD[0]), valu('v_add_u32', vD[3], 12 * 1280, vD[0]),
          valu('v_lshl_add_u32', 'v6', 'v4', 2, 'v6'), valu('v_mul_u32_u24', 'v7', 1280, 'v6'),
          valu('v_add_u32', 'v7', 'v7', 'v3'), valu('v_add_u32', vD[4], 256, 'v7')]
    P += [salu('s_mul_i32', sWM0, sWAVE, 5120), salu('s_mov_b32', sROW, 0), salu('s_mov_b32', sWR, 0), salu('s_mov_b32', sRD, 0)]

    def dma_stage(tag):
        g = []
        for n in range(5):
            g.append([salu('s_add_u32', sT[3], sWM0, sWR), salu('s_add_u32', 'm0', sT[3], 1024 * n), dma(vD[n], s(S_W, 4), sROW, tag=tag)])
        g.append([salu('s_add_u32', sROW, sROW, 64 * 1280),
                  salu('s_add_u32', sWR, sWR, K3_SLOT), scmp('s_cmp_ge_u32', sWR, K3_LDS), salu('s_cselect_b32', sWR, 0, sWR)])
        return g

    def fb_load(kslot, sp):
        return [buf_load(fb(kslot, b), vX[b], s(S_WS, 4), sFOFF, 1024 * sp, flags=FL_X) for b in range(2)]

    LOOK = K3_NSLOT - 2
    for g in range(4):
        for sp in range(4):
            P += fb_load(4 * g + sp, sp)
            if sp == 0:
                P += dma_stage(('S', g))
        P.append(salu('s_add_u32', sFOFF, sFOFF, 4096))
    P += lane_tr_part(vA0L, vL, 'v1', 'v2', 2048, 32, 64)
    P += lane_tr_part(vA1L, vL, 'v1', 'v2', 512, 32, 64)
    for r in range(160):
        P.append(valu('v_mov_b32', v(r), 0))

    D = 6

    def rd(F):
        sp, t = F // 5, F % 5
        d = afr(F)
        out = []
        for q in range(2):
            if t < 4:
                out.append(ds_read('ds_read_b64_tr_b16', a(d + 2 * q, 2), vA0, sp * 5120 + q * 1024 + t * 256))
            else:
                out.append(ds_read('ds_read_b64_tr_b16', a(d + 2 * q, 2), vA1, sp * 5120 + 4096 + q * 256))
        return out

    def set_rd(first=False):
        out = []
        if not first:
            out += [salu('s_add_u32', sRD, sRD, K3_SLOT), scmp('s_cmp_ge_u32', sRD, K3_LDS), salu('s_cselect_b32', sRD, 0, sRD)]
        out += [valu('v_add_u32', vA0, sRD, vA0L), valu('v_add_u32', vA1, sRD, vA1L)]
        return out

    P += [barrier(waitjob=('S', 0))]
    P += stamp(1)
    P += set_rd(True)
    for F in range(D):
        P += rd(F)

    def stage(q4):
        M = []
        for m in range(40):
            sp, t, b = m // 10, (m % 10) // 2, m % 2
            M.append(mfma(acc(t, b), a(afr(5 * sp + t), 4), fb(4 * q4 + sp, b)))
        fill = []
        for F in range(D, 20):
            for k, ins in enumerate(rd(F)):
                fill.append((2 * (F - D) + k + 0.1, ins))
        pb = 2 * (20 - D)
        fill.append((pb - 0.5, barrier(waitjob=lambda it: ('S', 4 * it + q4 + 1))))
        for ins in set_rd():
            fill.append((pb - 0.4, ins))
        for F in range(D):
            for k, ins in enumerate(rd(F)):
                fill.append((pb + 2 * F + k + 0.1, ins))
        gs = dma_stage(lambda it: ('S', 4 * it + q4 + LOOK))
        for n, g in enumerate(gs):
            for ins in g:
                fill.append((1 + n * 4 + 0.5, ins))
        for sp in range(4):
            for ins in fb_load(4 * q4 + sp, sp):
                fill.append((10 * sp + 9.6, ins))
        fill.append((39.7, salu('s_add_u32', sFOFF, sFOFF, 4096)))
        if 'k3nob' in EXP:
            fill = [(p, i) for p, i in fill if i.kind != 'vld']
        if 'k3nodma' in EXP:
            fill = [(p, i) for p, i in fill if i.kind != 'dma' and i.kind != 'bar']
        if 'k3nomfma' in EXP:
            fill = [(p, i) for p, i in fill if i.kind != 'dsr']
            M = [valu('v_accvgpr_read_b32', 'v210', 'a%d' % min(x[1] for x in m.srcab if x[1] < 128)) for m in M]
        return interleave(M, fill)

    body = []
    for q4 in range(4):
        body += stage(q4)
    body += [salu('s_sub_u32', sCNT, sCNT, 1), scmp('s_cmp_lg_u32', sCNT, 0), raw('s_cbranch_scc1 L_k3_loop', 'br', rd=['scc'])]
    P.append(Loop('L_k3_loop', 4, body))
    P += stamp(2)
    P.append(waitcnt(vm=20))
    for k in range(5):
        P.append(salu('s_mov_b32', s(50 + k), 4096 * k))
    for t in range(5):
        for b in range(2):
            for g4 in range(4):
                P.append(buf_store(v(16 * (2 * t + b) + 4 * g4, 4), vPO[b], s(S_WS, 4), s(50 + t), 1024 * g4, flags=FL_PS))
    P += stamp(3)
    if STAMP:
        P.append(I('s_memrealtime s[84:85]', 'smem', (), regs('s[84:85]')))
    P += stamp_store(5, s(S_WS, 4), sWAVE, 1 << 20, 'v210', 'v211', extra=2)
    P += rt_end(2, s(S_WS, 4), 230)
    P += [label('L_k3_end'), endpgm()]
    return kernel_text('k3_proj_kernel', P, 512, 256)


def k4():
    P = []
    P += [scmp('s_cmp_ge_u32', 's2', 640), raw('s_cbranch_scc1 L_k4_end', 'br', rd=['scc'])]
    P += rt_begin()
    P += [sload(s(4, 2), 's[0:1]', 0), sload(s(6, 2), 's[0:1]', 72), sload(s(40, 2), 's[0:1]', 88)]
    P += [valu('v_lshrrev_b32', 'v1', 6, 'v0'), valu('v_and_b32', 'v2', 63, 'v0'), readfirstlane('s24', 'v1')]
    P += [salu('s_lshl_b32', 's25', 's2', 2), salu('s_add_u32', 's25', 's25', 's24'),
          salu('s_mul_i32', 's26', 's25', 52429), salu('s_lshr_b32', 's26', 's26', 21),
          salu('s_mul_i32', 's27', 's26', 40), salu('s_sub_u32', 's27', 's25', 's27'),
          salu('s_lshl_b32', 's28', 's25', 11), salu('s_add_u32', 's28', 's28', P_OFF),
          valu('v_lshlrev_b32', 'v3', 4, 'v2'), valu('v_add_u32', 'v3', 's28', 'v3')]
    P += [salu('s_lshl_b32', 's29', 's26', 5), valu('v_and_b32', 'v4', 31, 'v2'), valu('v_add_u32', 'v4', 's29', 'v4'),
          valu('v_mul_u32_u24', 'v4', 1280, 'v4'), valu('v_lshrrev_b32', 'v5', 5, 'v2'), valu('v_lshl_add_u32', 'v4', 'v5', 4, 'v4'),
          salu('s_lshl_b32', 's29', 's27', 5), valu('v_add_u32', 'v4', 's29', 'v4')]
    P += srd(8, 's4', 's5', 2048 * 1280) + srd(12, 's6', 's7', 2048 * 1280) + srd(16, 's40', 's41', WS_BYTES)
    CH = 64 * 4 * 20480
    for c in range(8):
        P.append(salu('s_mov_b32', s(50 + c), CH * c))
    for c in range(8):
        for h in range(2):
            P.append(buf_load(v(16 + 8 * c + 4 * h, 4), 'v3', s(16, 4), s(50 + c), 1024 * h, flags=FL_PL))
    P.append(buf_load(v(8, 4), 'v4', s(8, 4)))
    for c in range(1, 6):
        for e in range(8):
            P.append(valu('v_add_f32', v(16 + e), v(16 + e), v(16 + 8 * c + e)))
    for e in range(8):
        P.append(valu('v_add_f32', v(64 + e), v(64 + e), v(72 + e)))
    for e in range(8):
        P.append(valu('v_mul_f32', v(80 + e), -LOG2E, v(64 + e)))
    for e in range(8):
        P.append(valu('v_exp_f32', v(80 + e), v(80 + e)))
    for e in range(8):
        P.append(valu('v_add_f32', v(80 + e), 1.0, v(80 + e)))
    for e in range(8):
        P.append(valu('v_rcp_f32', v(80 + e), v(80 + e)))
    for e in range(8):
        P.append(valu('v_mul_f32', v(64 + e), v(64 + e), v(80 + e)))
    for r in range(4):
        P += [valu('v_lshlrev_b32', v(88 + 2 * r), 16, v(8 + r)), valu('v_and_b32', v(89 + 2 * r), 0xffff0000, v(8 + r))]
    for e in range(8):
        P.append(valu('v_fmac_f32', v(88 + e), v(16 + e), v(64 + e)))
    for r in range(4):
        P.append(valu('v_cvt_pk_bf16_f32', v(8 + r), v(88 + 2 * r), v(89 + 2 * r)))
    P.append(buf_store(v(8, 4), 'v4', s(12, 4)))
    P += rt_end(3, s(16, 4), 80)
    P += [label('L_k4_end'), endpgm()]
    return kernel_text('k4_fin_kernel', P, 96, 96)


def main():
    hdr = open('cdna_kernels/%s.s.ref' % NAME).read().split('\n')
    com = [l for l in hdr if l.startswith(';') and '@launch' not in l and 'Override launch' not in l and 'grid=ceil' not in l]
    out = '\n'.join(com) + '\n'
    out += '; @launch kernel=k1_ln_kernel grid=(256,1,1) block=(128,1,1) lds=0\n'
    out += '; @launch kernel=k2_attn_kernel grid=(256,1,1) block=(256,1,1) lds=%d\n' % K2_LDS
    out += '; @launch kernel=k3_proj_kernel grid=(256,1,1) block=(256,1,1) lds=%d\n' % K3_LDS
    out += '; @launch kernel=k4_fin_kernel grid=(640,1,1) block=(256,1,1) lds=0\n'
    out += '.amdgcn_target "amdgcn-amd-amdhsa--gfx950"\n.text\n'
    descs = []
    for f in (k1, k2, k3, k4):
        t, d = f()
        out += t
        descs.append(d)
    out += '.section .rodata,"a"\n'
    for d in descs:
        out += '.p2align 6\n' + d
    dst = sys.argv[1] if len(sys.argv) > 1 else 'cdna_kernels/%s.s' % NAME
    open(dst, 'w').write(out)


if __name__ == '__main__':
    main()
```

```python
import math
import sys
from asmgen import *

NAME = 'recurrent_scan__sliding_block_cached__glu_gated_geglu__prompt'

XF_OFF = 0
F_OFF = 4 << 20
P_OFF = 40 << 20
WS_BYTES = 268435456
LOG2E = 1.4426950408889634
import os
FL_W = os.environ.get('FL_W', '')
FL_X = os.environ.get('FL_X', '')
FL_ST = os.environ.get('FL_ST', '')
FL_PS = os.environ.get('FL_PS', '')
FL_PL = os.environ.get('FL_PL', '')
FL_IN = os.environ.get('FL_IN', '')
EXP = os.environ.get('EXP', '')
PF1_ROWS = int(os.environ.get('PF1_ROWS', '4'))
FL_PF = os.environ.get('FL_PF', '')
_dma0 = dma


def dma(voff, srd, soff=0, off=0, tag=None, flags=''):
    return _dma0(voff, srd, soff, off, tag, FL_W)


def srd(base_s, lo, hi, nrec):
    return [salu('s_mov_b32', s(base_s), lo), salu('s_and_b32', s(base_s + 1), hi, 0xffff),
            salu('s_mov_b32', s(base_s + 2), nrec), salu('s_mov_b32', s(base_s + 3), 0x20000)]


def add64(lo, hi, x):
    return [salu('s_add_u32', s(lo), s(lo), x), salu('s_addc_u32', s(hi), s(hi), 0)]


def kernel_text(name, items, nvgpr, accum, extra_tail=''):
    trace = finalize(items)
    lines = emit(items)
    txt = '.globl %s\n.p2align 8\n.type %s,@function\n%s:\n' % (name, name, name)
    txt += '\n'.join(lines) + '\n' + extra_tail
    desc = '''.amdhsa_kernel %s
  .amdhsa_next_free_vgpr %d
  .amdhsa_next_free_sgpr 102
  .amdhsa_accum_offset %d
  .amdhsa_group_segment_fixed_size 0
  .amdhsa_kernarg_size 96
  .amdhsa_user_sgpr_count 2
  .amdhsa_user_sgpr_kernarg_segment_ptr 1
  .amdhsa_system_sgpr_workgroup_id_x 1
.end_amdhsa_kernel
''' % (name, nvgpr, accum)
    sys.stderr.write('%s: %s\n' % (name, stats(trace)))
    return txt, desc


STAMP = int(__import__('os').environ.get('STAMP', '0'))
STAMP_OFF = 200 << 20


def stamp(i):
    if not STAMP:
        return []
    return [I('%s %s' % ('s_memrealtime' if STAMP == 2 else 's_memtime', s(72 + 2 * i, 2)), 'smem', (), regs(s(72 + 2 * i, 2)))]


def stamp_store(n, srdname, wave_s, koff, vt0, vt1, extra=0):
    if not STAMP:
        return []
    out = [waitcnt(vm=0)] + stamp(n - 1) + [waitcnt(lgkm=0)]
    out += [salu('s_lshl_b32', 's100', 's2', 2), salu('s_add_u32', 's100', 's100', wave_s), salu('s_lshl_b32', 's100', 's100', 6),
            salu('s_add_u32', 's100', 's100', STAMP_OFF + koff), valu('v_mov_b32', vt0, 's100')]
    for i in range(n + extra):
        out += [valu('v_mov_b32', vt1, s(72 + 2 * i)), buf_store(vt1, vt0, srdname, 0, 4 * i), nop(1)]
    return out


def rt_begin():
    if not STAMP:
        return []
    return [I('s_memrealtime s[96:97]', 'smem', (), regs('s[96:97]'))]


def rt_end(kidx, srdname, vt):
    if not STAMP:
        return []
    out = [waitcnt(vm=0), I('s_memrealtime s[98:99]', 'smem', (), regs('s[98:99]')), waitcnt(lgkm=0)]
    out += [salu('s_lshl_b32', 's100', 's2', 3), salu('s_add_u32', 's100', 's100', STAMP_OFF + (4 << 20) + kidx * 65536),
            valu('v_mov_b32', v(vt), 's96'), valu('v_mov_b32', v(vt + 1), 's98'), valu('v_mov_b32', v(vt + 2), 's100'),
            buf_store(v(vt, 2), v(vt + 2), srdname)]
    return out


def endpgm():
    return raw('s_endpgm', 'br')


def k1():
    P = []
    P += [scmp('s_cmp_ge_u32', 's2', 256), raw('s_cbranch_scc1 L_k1_end', 'br', rd=['scc'])]
    P += rt_begin()
    P += [sload(s(4, 2), 's[0:1]', 0), sload(s(6, 2), 's[0:1]', 88)]
    P += [valu('v_and_b32', 'v1', 15, 'v0'),
          valu('v_lshrrev_b32', 'v2', 4, 'v0'),
          salu('s_lshl_b32', 's3', 's2', 3),
          valu('v_add_u32', 'v2', 's3', 'v2'),
          valu('v_mul_u32_u24', 'v3', 1280, 'v2'),
          valu('v_lshl_add_u32', 'v3', 'v1', 4, 'v3')]
    P += srd(8, 's4', 's5', 2048 * 1280)
    P += srd(12, 's6', 's7', WS_BYTES)
    X = 8
    PF = []
    if 'nopf1' not in EXP:
        PF += [sload(s(24, 2), 's[0:1]', 24), sload(s(28, 4), 's[0:1]', 48)]
        PF += [salu('s_and_b32', 's32', 's2', 7), salu('s_lshr_b32', 's33', 's2', 3),
               salu('s_mul_i32', 's34', 's32', 1536), salu('s_mul_i32', 's35', 's33', PF1_ROWS * 12288), salu('s_add_u32', 's34', 's34', 's35'),
               salu('s_mul_i32', 's36', 's32', 384), salu('s_mul_i32', 's35', 's33', PF1_ROWS * 3072), salu('s_add_u32', 's36', 's36', 's35')]
        PF += srd(40, 's24', 's25', 640 * 12288) + srd(44, 's28', 's29', 640 * 3072) + srd(48, 's30', 's31', 640 * 3072)
        for n in range(PF1_ROWS * 96 // 128):
            PF += [valu('v_add_u32', 'v88', 128 * n, 'v0'), valu('v_mul_u32_u24', 'v89', 683, 'v88'), valu('v_lshrrev_b32', 'v89', 16, 'v89'),
                   valu('v_mul_u32_u24', 'v90', 96, 'v89'), valu('v_sub_u32', 'v90', 'v88', 'v90'),
                   valu('v_mul_u32_u24', 'v89', 12288, 'v89'), valu('v_lshl_add_u32', 'v89', 'v90', 4, 'v89')]
            ld = buf_load(v(92, 4), 'v89', s(40, 4), 's34', flags=FL_W)
            ld.wr = set()
            PF.append(ld)
        for n in range((PF1_ROWS * 24 + 127) // 128):
            PF += [valu('v_add_u32', 'v88', 128 * n, 'v0'), valu('v_min_u32', 'v88', PF1_ROWS * 24 - 1, 'v88') if PF1_ROWS * 24 - 1 <= 64 else valu('v_min_u32', 'v88', PF1_ROWS * 24 - 1, 'v88'),
                   valu('v_mul_u32_u24', 'v89', 2731, 'v88'), valu('v_lshrrev_b32', 'v89', 16, 'v89'),
                   valu('v_mul_u32_u24', 'v90', 24, 'v89'), valu('v_sub_u32', 'v90', 'v88', 'v90'),
                   valu('v_mul_u32_u24', 'v89', 3072, 'v89'), valu('v_lshl_add_u32', 'v89', 'v90', 4, 'v89')]
            for sr in (44, 48):
                ld = buf_load(v(92, 4), 'v89', s(sr, 4), 's36', flags=FL_W)
                ld.wr = set()
                PF.append(ld)
        PF += [raw('s_getpc_b64 s[52:53]', 'salu', wr=['s[52:53]']), label('L_k1_pc'),
               raw('s_add_u32 s52, s52, k2_attn_kernel-L_k1_pc', 'salu', rd=['s52'], wr=['s52', 'scc']),
               salu('s_addc_u32', 's53', 's53', 0),
               salu('s_lshl_b32', 's54', 's33', 11),
               valu('v_lshlrev_b32', 'v88', 4, 'v0'), valu('v_add_u32', 'v88', 's54', 'v88'),
               valu('v_min_u32', 'v88', 'CODE_END-k2_attn_kernel-16', 'v88'),
               raw('global_load_dwordx4 v[92:95], v88, s[52:53]', 'vld', rd=['v88', 's[52:53]'])]
    for n in range(5):
        P.append(buf_load(v(X + 4 * n, 4), 'v3', s(8, 4), 0, 256 * n, flags=FL_IN))
    P += PF
    P += [valu('v_lshrrev_b32', 'v4', 5, 'v2'),
          salu('s_mov_b32', 's16', 40960),
          valu('v_mul_lo_u32', 'v4', 'v4', 's16'),
          valu('v_lshrrev_b32', 'v5', 1, 'v1'),
          valu('v_lshl_add_u32', 'v4', 'v5', 10, 'v4'),
          valu('v_and_b32', 'v5', 31, 'v2'),
          valu('v_lshl_add_u32', 'v4', 'v5', 4, 'v4'),
          valu('v_and_b32', 'v5', 1, 'v1'),
          valu('v_lshl_add_u32', 'v4', 'v5', 9, 'v4')]
    for n in range(5):
        P.append(salu('s_mov_b32', s(20 + n), XF_OFF + 8192 * n))
    Fv = 32
    for r in range(20):
        P.append(valu('v_lshlrev_b32', v(Fv + 2 * r), 16, v(X + r)))
        P.append(valu('v_and_b32', v(Fv + 2 * r + 1), 0xffff0000, v(X + r)))
    for k in range(4):
        P.append(valu('v_add_f32', v(72 + k), v(Fv + k), v(Fv + 4 + k)))
    for r in range(8, 40):
        P.append(valu('v_add_f32', v(72 + r % 4), v(72 + r % 4), v(Fv + r)))
    P += [valu('v_add_f32', 'v72', 'v72', 'v73'), valu('v_add_f32', 'v74', 'v74', 'v75'), valu('v_add_f32', 'v72', 'v72', 'v74')]

    def row_allreduce(reg, tmp):
        out = []
        for sh in (8, 4, 2, 1):
            out.append(valu('v_add_f32_dpp', tmp, reg, reg, mods='row_ror:%d row_mask:0xf bank_mask:0xf' % sh))
            out.append(valu('v_mov_b32', reg, tmp))
        return out
    P += row_allreduce('v72', 'v73')
    P.append(valu('v_mul_f32', 'v72', 1.0 / 640.0, 'v72'))
    for r in range(40):
        P.append(valu('v_sub_f32', v(80 + r % 8), v(Fv + r), 'v72'))
        if r < 4:
            P.append(valu('v_mul_f32', v(76 + r), v(80 + r % 8), v(80 + r % 8)))
        else:
            P.append(valu('v_fmac_f32', v(76 + r % 4), v(80 + r % 8), v(80 + r % 8)))
    P += [valu('v_add_f32', 'v76', 'v76', 'v77'), valu('v_add_f32', 'v78', 'v78', 'v79'), valu('v_add_f32', 'v76', 'v76', 'v78')]
    P += row_allreduce('v76', 'v73')
    P.append(valu('v_mul_f32', 'v76', 1.0 / 640.0, 'v76'))
    P += [valu('v_cvt_pk_bf16_f32', 'v73', 'v72', 'v76'),
          valu('v_lshlrev_b32', 'v72', 16, 'v73'),
          valu('v_and_b32', 'v76', 0xffff0000, 'v73'),
          valu('v_add_f32', 'v76', 1e-5, 'v76'),
          valu('v_cvt_pk_bf16_f32', 'v76', 'v76', 'v76'),
          valu('v_lshlrev_b32', 'v76', 16, 'v76'),
          valu('v_sqrt_f32', 'v76', 'v76'),
          valu('v_cvt_pk_bf16_f32', 'v76', 'v76', 'v76'),
          valu('v_lshlrev_b32', 'v76', 16, 'v76'),
          valu('v_rcp_f32', 'v77', 'v76')]
    for r in range(20):
        x0, x1 = v(Fv + 2 * r), v(Fv + 2 * r + 1)
        t0, t1, t2, t3 = v(80 + (r % 2) * 4), v(81 + (r % 2) * 4), v(82 + (r % 2) * 4), v(83 + (r % 2) * 4)
        P += [valu('v_sub_f32', x0, x0, 'v72'), valu('v_sub_f32', x1, x1, 'v72'),
              valu('v_cvt_pk_bf16_f32', t0, x0, x1),
              valu('v_lshlrev_b32', x0, 16, t0), valu('v_and_b32', x1, 0xffff0000, t0),
              valu('v_mul_f32', t0, x0, 'v77'), valu('v_mul_f32', t1, x1, 'v77'),
              valu('v_fma_f32', t2, '-' + t0, 'v76', x0), valu('v_fma_f32', t3, '-' + t1, 'v76', x1),
              valu('v_fmac_f32', t0, t2, 'v77'), valu('v_fmac_f32', t1, t3, 'v77'),
              valu('v_cvt_pk_bf16_f32', v(X + r), t0, t1)]
        if r % 4 == 3:
            n = r // 4
            P.append(buf_store(v(X + 4 * n, 4), 'v4', s(12, 4), s(20 + n)))
    P += rt_end(0, s(12, 4), 80)
    P += [label('L_k1_end'), endpgm()]
    return kernel_text('k1_ln_kernel', P, 96, 96)


def lane_tr_part(dst, lane, t0, t1, hh_stride, g1_stride, row_stride):
    out = [valu('v_lshrrev_b32', t0, 5, lane),
           valu('v_mul_u32_u24', dst, hh_stride, t0),
           valu('v_bfe_u32', t0, lane, 2, 2),
           valu('v_mul_u32_u24', t0, row_stride, t0),
           valu('v_add_u32', dst, dst, t0),
           valu('v_bfe_u32', t0, lane, 4, 1),
           valu('v_mul_u32_u24', t0, g1_stride, t0),
           valu('v_add_u32', dst, dst, t0),
           valu('v_and_b32', t0, 1, lane),
           valu('v_lshlrev_b32', t0, 4, t0),
           valu('v_bfe_u32', t1, lane, 1, 1),
           valu('v_lshl_add_u32', t0, t1, 3, t0),
           valu('v_add_u32', dst, dst, t0)]
    return out


SLOT1 = 37120
GU_OFF = 24576
UP_REL = 6272
UNIT = 24576
RING2 = 1024
K2_LDS = 148480
THRESH = float(__import__('os').environ.get('THRESH', '64'))


def k2():
    P = []
    S_WQ, S_GU, S_K, S_V, S_WS = 4, 8, 12, 16, 20
    sWAVE, sHEAD, sQB = 's24', 's25', 's26'
    sT = ['s27', 's28', 's29', 's30', 's31']
    sBASE = 's42'
    sKROW = 's43'
    sGROW = 's44'
    sXOFF = 's45'
    sCNT = 's46'
    sWM0 = 's47'
    sGM0 = 's48'
    sC = 's49'
    sRD = 's50'
    sWR = 's51'
    sKT = 's52'
    sVT = 's53'
    sPEND = 's54'
    sKM0 = 's55'
    sVM0 = 's56'
    sFO = ['s57', 's58', 's59']
    sFH = 's62'
    sTHR = 's63'
    sK0, sK1 = 's64', 's65'
    LINK = 's[60:61]'
    sPF = 's66'
    vPF = 'v251'

    vL = 'v192'
    vDQ = [v(193 + i) for i in range(6)]
    vDG = [v(199 + i) for i in range(3)]
    vAqL, vAgL, vAq, vAg = 'v202', 'v203', 'v204', 'v205'
    vX = ['v206', 'v207']
    vDK, vDVa, vDVb = 'v208', 'v209', 'v210'
    vKL = 'v211'
    vK = [v(212 + i) for i in range(4)]
    vV = 'v216'
    vM = ['v217', 'v218']
    vLs = ['v219', 'v220']
    vF = ['v221', 'v222']
    vFO = ['v223', 'v224']
    vMX = ['v225', 'v226']
    vT = [v(227 + i) for i in range(24)]

    def qacc(t, b):
        return v(16 * (2 * t + b), 16)

    def qfrag(b, ks):
        t, u = ks // 2, ks % 2
        return v(8 * (2 * t + b) + 4 * u, 4)

    def guacc(j, b):
        return a(16 * (2 * j + b), 16)

    def xb(kslot, b):
        return a(96 + 8 * kslot + 4 * b, 4)

    def afrag1(F):
        return 160 + 4 * (F % 12)

    def afrag2(F):
        return 208 + 4 * (F % 12)

    def sacc(par, b):
        return 96 + 32 * par + 16 * b

    def pfrag(par, b, u):
        return v(160 + 16 * par + 8 * b + 4 * u, 4)

    def oacc(t, b):
        return 16 * (2 * t + b)

    P += [scmp('s_cmp_ge_u32', 's2', 256), raw('s_cbranch_scc1 L_k2_end', 'br', rd=['scc'])]
    P += stamp(0) + rt_begin()
    P += [sload(s(32, 4), 's[0:1]', 8), sload(s(36, 2), 's[0:1]', 24), sload(s(68, 4), 's[0:1]', 48), sload(s(40, 2), 's[0:1]', 88),
          sload(s(88, 2), 's[0:1]', 32), sload(s(90, 2), 's[0:1]', 64)]
    P += [valu('v_lshrrev_b32', 'v1', 6, 'v0'), valu('v_and_b32', vL, 63, 'v0'), readfirstlane(sWAVE, 'v1')]
    P += [salu('s_and_b32', sT[0], 's2', 7), salu('s_lshl_b32', sT[0], sT[0], 2),
          salu('s_lshr_b32', sT[1], 's2', 3), salu('s_and_b32', sT[1], sT[1], 3),
          salu('s_add_u32', sHEAD, sT[0], sT[1]), salu('s_lshr_b32', sQB, 's2', 5)]
    P += [salu('s_lshl_b32', sT[0], sQB, 3), salu('s_lshl_b32', sT[1], sWAVE, 1), salu('s_add_u32', sT[0], sT[0], sT[1]),
          salu('s_mul_i32', sT[1], sT[0], 40960), salu('s_mul_i32', sT[2], sT[0], 491520),
          valu('v_lshlrev_b32', 'v1', 4, vL),
          valu('v_add_u32', vX[0], sT[1], 'v1'), valu('v_add_u32', vX[1], 40960, vX[0]),
          valu('v_add_u32', vFO[0], sT[2], 'v1'), valu('v_add_u32', vFO[1], 491520, vFO[0])]
    P += [valu('v_bfe_u32', 'v2', vL, 2, 2),
          valu('v_and_b32', 'v3', 3, vL), valu('v_lshlrev_b32', 'v3', 4, 'v3'),
          valu('v_lshrrev_b32', 'v4', 4, vL), valu('v_lshl_add_u32', 'v4', 'v4', 6, 'v3'),
          valu('v_bfe_u32', 'v5', vL, 4, 1), valu('v_lshl_add_u32', 'v5', 'v5', 6, 'v3'), valu('v_add_u32', 'v5', 256, 'v5'),
          valu('v_lshrrev_b32', 'v6', 5, vL), valu('v_lshl_add_u32', 'v6', 'v6', 2, 'v2'),
          salu('s_lshl_b32', sT[0], sWAVE, 4),
          valu('v_add_u32', 'v7', sT[0], 'v2'), valu('v_add_u32', 'v8', sT[0], 'v6'),
          valu('v_mul_u32_u24', 'v7', 12288, 'v7'), valu('v_mul_u32_u24', 'v8', 12288, 'v8'),
          valu('v_add_u32', vDQ[0], 'v7', 'v4'), valu('v_add_u32', vDQ[2], 'v8', 'v5'),
          valu('v_add_u32', vDQ[1], 4 * 12288, vDQ[0]), valu('v_add_u32', vDQ[3], 8 * 12288, vDQ[0]),
          valu('v_add_u32', vDQ[4], 12 * 12288, vDQ[0]), valu('v_add_u32', vDQ[5], 8 * 12288, vDQ[2])]
    P += [salu('s_lshl_b32', sT[0], sWAVE, 3),
          valu('v_add_u32', 'v7', sT[0], 'v2'), valu('v_add_u32', 'v8', sT[0], 'v6'),
          valu('v_mul_u32_u24', 'v7', 384, 'v7'), valu('v_mul_u32_u24', 'v8', 384, 'v8'),
          valu('v_add_u32', vDVa, 'v7', 'v4'), valu('v_add_u32', vDVb, 'v8', 'v5')]
    P += [valu('v_lshrrev_b32', 'v7', 3, vL), valu('v_add_u32', 'v7', sT[0], 'v7'),
          valu('v_bfe_u32', 'v8', 'v7', 1, 3), valu('v_and_b32', 'v9', 7, vL), valu('v_xor_b32', 'v8', 'v8', 'v9'),
          valu('v_mul_u32_u24', 'v7', 384, 'v7'), valu('v_lshl_add_u32', vDK, 'v8', 4, 'v7')]
    P += [salu('s_and_b32', sT[0], sWAVE, 1), salu('s_mul_i32', sT[0], sT[0], 192), salu('s_mov_b32', sT[1], 43691)]
    for n in range(3):
        P += [valu('v_add_u32', 'v7', sT[0], vL), valu('v_add_u32', 'v7', 64 * n, 'v7'),
              valu('v_mul_u32_u24', 'v8', sT[1], 'v7'), valu('v_lshrrev_b32', 'v8', 18, 'v8'),
              valu('v_mul_u32_u24', 'v9', 6, 'v8'), valu('v_sub_u32', 'v9', 'v7', 'v9'),
              valu('v_mul_u32_u24', 'v8', 3072, 'v8'), valu('v_lshl_add_u32', vDG[n], 'v9', 4, 'v8')]
    P += [salu('s_mul_i32', sT[0], sHEAD, 384)]
    P += add64(36, 37, sT[0])
    P += [salu('s_sub_u32', sT[1], 640 * 12288, sT[0])]
    P += srd(S_WQ, 's36', 's37', sT[1])
    P += srd(S_WS, 's40', 's41', WS_BYTES)
    P += [scmp('s_cmp_lt_u32', sWAVE, 2), salu('s_cselect_b32', 's68', 's68', 's70'), salu('s_cselect_b32', 's69', 's69', 's71'),
          salu('s_mul_i32', sT[0], sHEAD, 96)]
    P += add64(68, 69, sT[0])
    P += [salu('s_sub_u32', sT[1], 640 * 3072, sT[0])]
    P += srd(S_GU, 's68', 's69', sT[1])
    P += [salu('s_mul_i32', sT[0], sHEAD, 786432), salu('s_add_u32', sT[0], sT[0], 589824)]
    P += add64(32, 33, sT[0]) + add64(34, 35, sT[0])
    P += srd(S_K, 's32', 's33', 196608) + srd(S_V, 's34', 's35', 196608)
    P += [salu('s_mul_i32', sWM0, sWAVE, 6144),
          salu('s_lshr_b32', sT[0], sWAVE, 1), salu('s_mul_i32', sT[0], sT[0], UP_REL),
          salu('s_and_b32', sT[1], sWAVE, 1), salu('s_mul_i32', sT[1], sT[1], 3072),
          salu('s_add_u32', sGM0, sT[0], sT[1]), salu('s_add_u32', sGM0, sGM0, GU_OFF),
          salu('s_lshl_b32', sKM0, sWAVE, 10),
          salu('s_mul_i32', sVM0, sWAVE, 3072), salu('s_add_u32', sVM0, sVM0, 12288)]
    P += [salu('s_mov_b32', sKROW, 0), salu('s_mov_b32', sGROW, 0), salu('s_mov_b32', sXOFF, XF_OFF)]

    def dma_proj(slot_s, slot_imm, tag):
        g = []
        for n in range(6):
            g.append([salu('s_add_u32', sT[3], sWM0, slot_imm + 1024 * n) if slot_s is None else
                      salu('s_add_u32', sT[3], sWM0, slot_s),
                      ] + ([] if slot_s is None else [salu('s_add_u32', sT[3], sT[3], slot_imm + 1024 * n)]) +
                     [salu('s_mov_b32', 'm0', sT[3]), dma(vDQ[n], s(S_WQ, 4), sKROW, tag=tag)])
        for n in range(3):
            g.append([salu('s_add_u32', sT[3], sGM0, slot_imm + 1024 * n) if slot_s is None else
                      salu('s_add_u32', sT[3], sGM0, slot_s),
                      ] + ([] if slot_s is None else [salu('s_add_u32', sT[3], sT[3], slot_imm + 1024 * n)]) +
                     [salu('s_mov_b32', 'm0', sT[3]), dma(vDG[n], s(S_GU, 4), sGROW, tag=tag)])
        g.append([salu('s_add_u32', sKROW, sKROW, 64 * 12288), salu('s_add_u32', sGROW, sGROW, 64 * 3072)])
        return g

    def xb_load(kslot, sp):
        return [buf_load(xb(kslot, b), vX[b], s(S_WS, 4), sXOFF, 1024 * sp, flags=FL_X) for b in range(2)]

    P += xb_load(0, 0)
    P += dma_proj(None, 0, ('P', 0))
    P += xb_load(1, 1) + xb_load(2, 2) + xb_load(3, 3)
    P.append(salu('s_add_u32', sXOFF, sXOFF, 4096))
    P += dma_proj(None, SLOT1, ('P', 1))
    for sp in range(4):
        P += xb_load(4 + sp, sp)
    P.append(salu('s_add_u32', sXOFF, sXOFF, 4096))
    P += lane_tr_part(vAqL, vL, 'v1', 'v2', 3072, 32, 64)
    P += lane_tr_part(vAgL, vL, 'v1', 'v2', 8 * 96, UP_REL, 96)
    P += [valu('v_and_b32', 'v1', 19, vL),
          valu('v_bfe_u32', 'v2', vL, 2, 1), valu('v_lshl_add_u32', 'v1', 'v2', 3, 'v1'),
          valu('v_bfe_u32', 'v2', vL, 3, 1), valu('v_lshl_add_u32', 'v1', 'v2', 2, 'v1'),
          valu('v_bfe_u32', 'v2', 'v1', 1, 3), valu('v_lshrrev_b32', 'v3', 5, vL), valu('v_xor_b32', 'v2', 'v2', 'v3'),
          valu('v_lshlrev_b32', 'v1', 7, 'v1'), valu('v_lshl_add_u32', vKL, 'v2', 4, 'v1')]
    P += [salu('s_mov_b32', sC, float(LOG2E / math.sqrt(192.0))), salu('s_mov_b32', sTHR, THRESH),
          salu('s_mov_b32', sPEND, 0),
          salu('s_mul_i32', sT[0], sHEAD, 12 * 1024), salu('s_add_u32', sFO[0], sT[0], F_OFF),
          salu('s_add_u32', sFO[1], sFO[0], 4096), salu('s_add_u32', sFO[2], sFO[0], 8192),
          salu('s_mul_i32', sT[0], sHEAD, 3 * 1024), salu('s_add_u32', sFH, sT[0], F_OFF + 384 * 1024),
          salu('s_mov_b32', sKT, 0), salu('s_mov_b32', sVT, 0),
          salu('s_mov_b32', sK0, float(-2.0 * math.sqrt(2.0 / math.pi) * LOG2E)),
          salu('s_mov_b32', sK1, float(-2.0 * math.sqrt(2.0 / math.pi) * LOG2E * 0.044715))]
    for b in range(2):
        P += [valu('v_mov_b32', vM[b], -3.0e38), valu('v_mov_b32', vLs[b], 0)]
    P += [salu('s_and_b32', sT[0], 's2', 7), scmp('s_cmp_lt_u32', sT[0], 6),
          salu('s_cselect_b32', 's88', 's88', 's90'), salu('s_cselect_b32', 's89', 's89', 's91'),
          salu('s_cselect_b32', sT[1], 4, 3), salu('s_cselect_b32', sT[3], 0, 6),
          salu('s_mul_i32', sT[1], sT[1], 2560),
          salu('s_sub_u32', sT[0], sT[0], sT[3]), salu('s_lshl_b32', sT[0], sT[0], 7),
          salu('s_lshr_b32', sT[3], 's2', 3), salu('s_lshl_b32', sT[3], sT[3], 2), salu('s_add_u32', sT[3], sT[3], sWAVE),
          salu('s_add_u32', sT[0], sT[0], sT[3]), salu('s_mul_i32', sT[0], sT[0], sT[1])]
    P += add64(88, 89, sT[0])
    P += srd(92, 's88', 's89', sT[1])
    P += [salu('s_mov_b32', sPF, 0), valu('v_lshlrev_b32', vPF, 4, vL)]
    for r in range(192):
        P.append(valu('v_mov_b32', v(r), 0))
    for r in range(96):
        P.append(valu('v_accvgpr_write_b32', a(r), 0))
    P += [salu('s_mov_b32', sBASE, 0)]

    D1 = 6

    def rd1(F):
        sp, f = F // 9, F % 9
        d = afrag1(F)
        out = []
        for q in range(2):
            if f < 6:
                off = sp * 6144 + (q * 1024 + f * 256 if f < 4 else 2048 + q * 512 + (f - 4) * 256)
                out.append(ds_read('ds_read_b64_tr_b16', a(d + 2 * q, 2), vAq, off))
            else:
                j = f - 6
                off = GU_OFF + (16 * sp + 4 * q) * 96 + 32 * j
                out.append(ds_read('ds_read_b64_tr_b16', a(d + 2 * q, 2), vAg, off))
        return out

    def set_rd1(slot_s, imm):
        if slot_s is None:
            return [valu('v_add_u32', vAq, imm, vAqL), valu('v_add_u32', vAg, imm, vAgL)]
        return [salu('s_add_u32', sT[4], slot_s, imm), valu('v_add_u32', vAq, sT[4], vAqL), valu('v_add_u32', vAg, sT[4], vAgL)]

    def dma_unit(tag, doK=True, doV=True, base_imm=None):
        g = []
        if doK:
            for ch in range(3):
                pre = [salu('s_add_u32', sT[3], sKM0, sWR), salu('s_add_u32', 'm0', sT[3], ch * 4096 - ch * 128)]
                g.append(pre + [dma(vDK, s(S_K, 4), sKT, ch * 128, tag=tag)])
            g.append([salu('s_add_u32', sKT, sKT, 12288)])
        if doV:
            g.append([salu('s_add_u32', sT[3], sVM0, sWR), salu('s_mov_b32', 'm0', sT[3]), dma(vDVa, s(S_V, 4), sVT, tag=tag)])
            g.append([salu('s_add_u32', sT[3], sVM0, sWR), salu('s_sub_u32', 'm0', sT[3], 512), dma(vDVa, s(S_V, 4), sVT, 1536, tag=tag)])
            g.append([salu('s_add_u32', sT[3], sVM0, sWR), salu('s_add_u32', 'm0', sT[3], 2048), dma(vDVb, s(S_V, 4), sVT, tag=tag)])
            g.append([salu('s_add_u32', sVT, sVT, 12288)])
        g.append([salu('s_add_u32', sWR, sWR, UNIT), scmp('s_cmp_ge_u32', sWR, RING2 + 6 * UNIT),
                  salu('s_cselect_b32', sWR, RING2, sWR)])
        return g

    def set_rd2():
        return [salu('s_add_u32', sRD, sRD, UNIT), scmp('s_cmp_ge_u32', sRD, RING2 + 6 * UNIT), salu('s_cselect_b32', sRD, RING2, sRD),
                valu('v_add_u32', vK[0], sRD, vKL), valu('v_add_u32', vV, sRD, vAqL),
                valu('v_xor_b32', vK[1], 32, vK[0]), valu('v_xor_b32', vK[2], 64, vK[0]), valu('v_xor_b32', vK[3], 96, vK[0])]

    def rdK(F, ks):
        return [ds_read('ds_read_b128', a(afrag2(F), 4), vK[ks & 3], (ks >> 2) * 4096)]

    def rdV(F, u, t):
        d = afrag2(F)
        out = []
        for q in range(2):
            off = 12288 + u * 6144 + (q * 1024 + t * 256 if t < 4 else 2048 + q * 512 + (t - 4) * 256)
            out.append(ds_read('ds_read_b64_tr_b16', a(d + 2 * q, 2), vV, off))
        return out

    P += [barrier(waitjob=('P', 0))]
    P += stamp(1)
    P += set_rd1(None, 0)
    for F in range(D1):
        P += rd1(F)

    def stage1(par, jobtag_next, dma_groups, do_xb, nxt_reads, nxt_setup, extra_fill=()):
        M = []
        for m in range(72):
            sp, f, b = m // 18, (m % 18) // 2, m % 2
            F = 9 * sp + f
            A = a(afrag1(F), 4)
            B = xb(4 * par + sp, b)
            D = qacc(f, b) if f < 6 else guacc(f - 6, b)
            M.append(mfma(D, A, B))
        fill = []
        for F in range(D1, 36):
            for k, ins in enumerate(rd1(F)):
                fill.append((2 * (F - D1) + k + 0.1, ins))
        pb = 2 * (36 - D1)
        fill.append((pb - 0.5, barrier(waitjob=jobtag_next)))
        for ins in nxt_setup:
            fill.append((pb - 0.4, ins))
        for F in range(D1):
            for k, ins in enumerate(nxt_reads(F)):
                fill.append((pb + 2 * F + k + 0.1, ins))
        ng = len(dma_groups)
        for n, g in enumerate(dma_groups):
            for ins in g:
                fill.append((1 + n * (50.0 / max(ng, 1)) + 0.5, ins))
        if do_xb:
            for sp in range(4):
                for ins in xb_load(4 * par + sp, sp):
                    fill.append((18 * sp + 17.6, ins))
            fill.append((71.7, salu('s_add_u32', sXOFF, sXOFF, 4096)))
        fill += list(extra_fill)
        return interleave(M, fill)

    body = []
    body += [salu('s_xor_b32', sT[2], sBASE, 2 * SLOT1)]
    body += stage1(0, lambda it: ('P', 2 * it + 1), dma_proj(sT[2], 0, lambda it: ('P', 2 * it + 2)), True, rd1, set_rd1(sBASE, SLOT1))
    body += stage1(1, lambda it: ('P', 2 * it + 2), dma_proj(sT[2], SLOT1, lambda it: ('P', 2 * it + 3)), True, rd1, set_rd1(sT[2], 0))
    body += [salu('s_mov_b32', sBASE, sT[2]),
             salu('s_sub_u32', sCNT, sCNT, 1), scmp('s_cmp_lg_u32', sCNT, 0), raw('s_cbranch_scc1 L_k2_p1', 'br', rd=['scc'])]
    P.append(salu('s_mov_b32', sCNT, 4))
    P.append(Loop('L_k2_p1', 4, body))
    P += stamp(2)
    P += [salu('s_mov_b32', sWR, RING2 + 3 * UNIT), salu('s_mov_b32', sRD, RING2 + 2 * UNIT)]
    P += stage1(0, ('P', 9), dma_unit(('U', 0), True, False), False, rd1, set_rd1(None, SLOT1))
    D2 = 6
    P += stage1(1, ('U', 0), dma_unit(('U', 1), True, False) + dma_unit(('U', 2)), False,
                lambda F: rdK(F, F), set_rd2(),
                extra_fill=[(54 + k // 8 + 4 + 0.6 + 0.01 * (k % 8), valu('v_cvt_pk_bf16_f32', v(k), v(2 * k), v(2 * k + 1))) for k in range(96)])

    def q_cvt():
        return [valu('v_cvt_pk_bf16_f32', v(k), v(2 * k), v(2 * k + 1)) for k in range(96)]

    def gu_math():
        out = []
        for j in range(3):
            for b in range(2):
                base = 16 * (2 * j + b)
                hreg = 160 + 4 * ((2 * j + b) % 4)
                hreg = 176 + 4 * ((2 * j + b) % 4)
                for e2 in range(4):
                    tt = []
                    for k in range(2):
                        e = 2 * e2 + k
                        g, u_, t = vT[3 * k + 6 * (e2 % 2)], vT[3 * k + 1 + 6 * (e2 % 2)], vT[3 * k + 2 + 6 * (e2 % 2)]
                        tt.append((g, u_, t))
                        out += [valu('v_accvgpr_read_b32', g, a(base + e)), valu('v_accvgpr_read_b32', u_, a(base + 8 + e))]
                    for g, u_, t in tt:
                        out += [valu('v_mul_f32', t, g, g)]
                    for g, u_, t in tt:
                        out += [valu('v_fma_f32', t, t, sK1, sK0) if False else valu('v_mul_f32', t, sK1, t)]
                    for g, u_, t in tt:
                        out += [valu('v_add_f32', t, sK0, t)]
                    for g, u_, t in tt:
                        out += [valu('v_mul_f32', t, t, g)]
                    for g, u_, t in tt:
                        out += [valu('v_exp_f32', t, t)]
                    for g, u_, t in tt:
                        out += [valu('v_mul_f32', g, g, u_)]
                    for g, u_, t in tt:
                        out += [valu('v_add_f32', t, 1.0, t)]
                    for g, u_, t in tt:
                        out += [valu('v_rcp_f32', t, t)]
                    for k in range(2):
                        e = 2 * e2 + k
                        out += [valu('v_accvgpr_write_b32', a(base + e), 0), valu('v_accvgpr_write_b32', a(base + 8 + e), 0)]
                    for g, u_, t in tt:
                        out += [valu('v_mul_f32', g, g, t)]
                    out += [valu('v_cvt_pk_bf16_f32', v(hreg + e2), tt[0][0], tt[1][0])]
                out += [buf_store(v(hreg, 4), vFO[b], s(S_WS, 4), sFH, 1024 * j, flags=FL_ST)]
        return out

    def softmax_head(par):
        out = []
        for b in range(2):
            S = sacc(par, b)
            out.append(valu('v_max3_f32', vMX[b], v(S), v(S + 1), v(S + 2)))
            for k in range(3, 15, 2):
                out.append(valu('v_max3_f32', vMX[b], vMX[b], v(S + k), v(S + k + 1)))
            out.append(valu('v_max_f32', vMX[b], vMX[b], v(S + 15)))
        out += [valu('v_fma_f32', vT[12], vMX[0], sC, '-' + vM[0]), valu('v_fma_f32', vT[13], vMX[1], sC, '-' + vM[1]),
                valu('v_max_f32', vT[12], vT[12], vT[13]),
                vcmp('v_cmp_lt_f32', 'vcc', sTHR, vT[12])]
        lab = 'L_k2_sk%d' % softmax_head.n
        softmax_head.n += 1
        call = [raw('s_cbranch_vccz %s' % lab, 'br', rd=['vcc']),
                raw('s_call_b64 %s, L_k2_newmax' % LINK, 'br', rd=[vMX[0], vMX[1], vM[0], vM[1], vLs[0], vLs[1]],
                    wr=[vM[0], vM[1], vLs[0], vLs[1], vF[0], vF[1], LINK, sPEND, vT[12], vT[13], vT[14], vT[15]]),
                label(lab)]
        out.append(call)
        return out
    softmax_head.n = 0

    def softmax_body(par):
        out = []
        for b in range(2):
            S = sacc(par, b)
            for u in range(2):
                for k2_ in range(4):
                    r0, r1 = S + 8 * u + 2 * k2_, S + 8 * u + 2 * k2_ + 1
                    out += [valu('v_fma_f32', v(r0), v(r0), sC, '-' + vM[b]), valu('v_fma_f32', v(r1), v(r1), sC, '-' + vM[b]),
                            valu('v_exp_f32', v(r0), v(r0)), valu('v_exp_f32', v(r1), v(r1))]
                    pr = 160 + 16 * par + 8 * b + 4 * u + k2_
                    out += [('late', [valu('v_add_f32', vLs[b], vLs[b], v(r0)),
                                      valu('v_cvt_pk_bf16_f32', v(pr), v(r0), v(r1)),
                                      valu('v_add_f32', vLs[b], vLs[b], v(r1))])]
        res = []
        pend = []
        for x in out:
            if isinstance(x, tuple):
                pend.append(x[1])
                if len(pend) > 1:
                    res += pend.pop(0)
            else:
                res.append(x)
        for p_ in pend:
            res += p_
        return res

    def rescale_check():
        lab = 'L_k2_rs%d' % rescale_check.n
        rescale_check.n += 1
        return [scmp('s_cmp_eq_u32', sPEND, 0), raw('s_cbranch_scc1 %s' % lab, 'br', rd=['scc']),
                raw('s_call_b64 %s, L_k2_rescale' % LINK, 'br', rd=[vF[0], vF[1], a(0, 192)], wr=[LINK, sPEND, a(0, 192), vT[16], vT[17], vT[18], vT[19]]),
                label(lab)]
    rescale_check.n = 0

    def iter2(par, doQK, doSM, doPV, nextQK, nextPV, jobnext, dma_groups, extra=None, pre=None, resc=True, epi=None):
        M = []
        frs = []
        if doQK:
            for ks in range(12):
                frs.append(('K', ks))
        if doPV:
            for u in range(2):
                for t in range(6):
                    frs.append(('V', u, t))
        nf = len(frs)
        for F, fr in enumerate(frs):
            A = a(afrag2(F), 4)
            for b in range(2):
                if fr[0] == 'K':
                    ks = fr[1]
                    D = v(sacc(par ^ 1, b), 16)
                    M.append(mfma(D, A, qfrag(b, ks), 0 if ks == 0 else D))
                else:
                    _, u, t = fr
                    D = a(oacc(t, b), 16)
                    M.append(mfma(D, A, pfrag(par ^ 1, b, u)))
        nM = len(M)

        def rd(F, fr):
            return rdK(F, fr[1]) if fr[0] == 'K' else rdV(F, fr[1], fr[2])
        fill = []
        for F in range(D2, nf):
            for k, ins in enumerate(rd(F, frs[F])):
                fill.append((2 * (F - D2) + k + 0.1, ins))
        if jobnext is not None:
            pb = 2 * (nf - D2)
            fill.append((pb - 0.5, barrier(waitjob=jobnext)))
            for ins in set_rd2():
                fill.append((pb - 0.4, ins))
            nfr = [('K', ks) for ks in range(12)] if nextQK else [('V', 0, t) for t in range(6)]
            for F in range(D2):
                for k, ins in enumerate(rd(nf + F, nfr[F])):
                    fill.append((pb + 2 * F + k + 0.1, ins))
        ng = len(dma_groups)
        for n, g in enumerate(dma_groups):
            for ins in g:
                fill.append((1 + n * ((nM - 14.0) / max(ng, 1)) + 0.5, ins))
        if pre:
            fill += pre
        if doQK and doPV and 'nopf2' not in EXP:
            ld = buf_load(v(252, 4), vPF, s(92, 4), sPF, flags=FL_PF)
            ld.wr = set()
            fill.append((30.5, ld))
            fill.append((30.6, salu('s_add_u32', sPF, sPF, 1024)))
        vs = []
        if doSM:
            vs += softmax_head(par) + softmax_body(par)
        if extra:
            vs = extra(vs)
        if vs:
            fill += spread(vs, 0.2, nM - 0.5)
        if epi:
            fill += epi
        out = interleave(M, fill)
        if doSM and resc:
            out += rescale_check()
        return out

    pre = []
    P += stamp(3)
    gm = gu_math()
    zero2 = [valu('v_accvgpr_write_b32', a(r), 0) for r in range(96, 192)]
    h1 = len(gm) // 3
    P += iter2(1, True, False, False, True, False, ('U', 1), dma_unit(('U', 3)), extra=lambda vs: gm[:h1], pre=pre)
    P += iter2(0, True, True, False, True, True, ('U', 2), dma_unit(('U', 4)) + dma_unit(('U', 5)),
               extra=lambda vs: gm[h1:] + zero2 + vs, resc=False)
    P.append(salu('s_mov_b32', sPEND, 0))
    P += stamp(4)
    body = []
    body += iter2(1, True, True, True, True, True, lambda it: ('U', 2 * it + 3), dma_unit(lambda it: ('U', 2 * it + 6)))
    body += iter2(0, True, True, True, True, True, lambda it: ('U', 2 * it + 4), dma_unit(lambda it: ('U', 2 * it + 7)))
    body += [salu('s_sub_u32', sCNT, sCNT, 1), scmp('s_cmp_lg_u32', sCNT, 0), raw('s_cbranch_scc1 L_k2_p2', 'br', rd=['scc'])]
    P.append(salu('s_mov_b32', sCNT, 7))
    P.append(Loop('L_k2_p2', 7, body))
    P += stamp(5)
    for F in range(D2):
        P += rdV(F, 0, F)
    P += iter2(1, False, True, True, False, True, ('U', 17), [])
    P += iter2(0, False, False, True, False, False, None, [])
    P += stamp(6)
    for b in range(2):
        P += [valu('v_mov_b32', vT[0], vLs[b]), permlane32_swap(vT[0], vLs[b])]
        P += [valu('v_add_f32', vLs[b], vLs[b], vT[0]), valu('v_rcp_f32', vLs[b], vLs[b])]
    n = 0
    for t in range(6):
        for b in range(2):
            for u in range(2):
                base = oacc(t, b) + 8 * u
                tmp = 96 + 16 * (n % 4)
                n += 1
                for e in range(8):
                    P.append(valu('v_accvgpr_read_b32', v(tmp + e), a(base + e)))
                for e in range(8):
                    P.append(valu('v_mul_f32', v(tmp + e), v(tmp + e), vLs[b]))
                for e in range(4):
                    P.append(valu('v_cvt_pk_bf16_f32', v(tmp + 8 + e), v(tmp + 2 * e), v(tmp + 2 * e + 1)))
                ks = 2 * t + u
                P.append(buf_store(v(tmp + 8, 4), vFO[b], s(S_WS, 4), sFO[ks // 4], 1024 * (ks % 4), flags=FL_ST))
    P += stamp(7)
    P += stamp_store(9, s(S_WS, 4), sWAVE, 0, vT[0], vT[1])
    P += rt_end(1, s(S_WS, 4), 230)
    P += [label('L_k2_end'), endpgm()]

    sub = []
    sub.append('L_k2_newmax:')
    sub.append('  s_nop 4')
    for b in range(2):
        t0, t1 = vT[12 + 2 * b], vT[13 + 2 * b]
        sub += ['  v_mov_b32 %s, %s' % (t0, vMX[b]),
                '  v_mov_b32 %s, %s' % (t1, vMX[b]),
                '  s_nop 1',
                '  v_permlane32_swap_b32 %s, %s' % (t0, t1),
                '  s_nop 1',
                '  v_max_f32 %s, %s, %s' % (t0, t0, t1),
                '  v_mul_f32 %s, %s, %s' % (t0, sC, t0),
                '  v_max_f32 %s, %s, %s' % (t0, t0, vM[b]),
                '  v_sub_f32 %s, %s, %s' % (t1, vM[b], t0),
                '  v_exp_f32 %s, %s' % (vF[b], t1),
                '  v_mov_b32 %s, %s' % (vM[b], t0),
                '  s_nop 1',
                '  v_mul_f32 %s, %s, %s' % (vLs[b], vLs[b], vF[b])]
    sub += ['  s_mov_b32 %s, 1' % sPEND, '  s_nop 4', '  s_setpc_b64 %s' % LINK]
    sub.append('L_k2_rescale:')
    sub.append('  s_nop 15')
    for t in range(6):
        for b in range(2):
            for r4 in range(4):
                base = oacc(t, b) + 4 * r4
                for e in range(4):
                    sub.append('  v_accvgpr_read_b32 %s, a%d' % (vT[16 + e], base + e))
                for e in range(4):
                    sub.append('  v_mul_f32 %s, %s, %s' % (vT[16 + e], vT[16 + e], vF[b]))
                for e in range(4):
                    sub.append('  v_accvgpr_write_b32 a%d, %s' % (base + e, vT[16 + e]))
    sub += ['  s_mov_b32 %s, 0' % sPEND, '  s_nop 4', '  s_setpc_b64 %s' % LINK]
    return kernel_text('k2_attn_kernel', P, 512, 256, '\n'.join(sub) + '\n')


K3_SLOT = 20480
K3_NSLOT = 6
K3_LDS = K3_SLOT * K3_NSLOT


def k3():
    P = []
    S_W, S_WS = 4, 8
    sWAVE, sQB, sCT, sCH = 's24', 's25', 's26', 's27'
    sT = ['s28', 's29', 's30', 's31', 's32']
    sROW, sFOFF, sCNT, sRD, sWR, sWM0 = 's42', 's43', 's44', 's45', 's46', 's47'
    sPO = 's48'
    vL = 'v192'
    vD = [v(193 + i) for i in range(5)]
    vA0L, vA1L, vA0, vA1 = 'v198', 'v199', 'v200', 'v201'
    vX = ['v202', 'v203']
    vPO = ['v204', 'v205']

    def acc(t, b):
        return v(16 * (2 * t + b), 16)

    def fb(kslot, b):
        return a(8 * kslot + 4 * b, 4)

    def afr(F):
        return 128 + 4 * (F % 20)

    P += [scmp('s_cmp_ge_u32', 's2', 256), raw('s_cbranch_scc1 L_k3_end', 'br', rd=['scc'])]
    P += stamp(0) + rt_begin()
    if STAMP:
        P.append(I('s_memrealtime s[82:83]', 'smem', (), regs('s[82:83]')))
    P += [sload(s(34, 2), 's[0:1]', 32), sload(s(36, 2), 's[0:1]', 64), sload(s(40, 2), 's[0:1]', 88)]
    P += [valu('v_lshrrev_b32', 'v1', 6, 'v0'), valu('v_and_b32', vL, 63, 'v0'), readfirstlane(sWAVE, 'v1')]
    P += [salu('s_and_b32', sCH, 's2', 7), salu('s_lshr_b32', sT[0], 's2', 3), salu('s_and_b32', sCT, sT[0], 3),
          salu('s_lshr_b32', sQB, 's2', 5)]
    P += [salu('s_lshl_b32', sT[0], sCH, 6), salu('s_mul_i32', sT[1], sCH, 48), salu('s_add_u32', sT[1], sT[1], 384 - 288),
          scmp('s_cmp_lt_u32', sCH, 6), salu('s_cselect_b32', sT[0], sT[0], sT[1]),
          salu('s_cselect_b32', sCNT, 4, 3)]
    P += [salu('s_lshl_b32', sFOFF, sT[0], 10), salu('s_add_u32', sFOFF, sFOFF, F_OFF)]
    P += [salu('s_lshl_b32', sT[1], sQB, 3), salu('s_lshl_b32', sT[2], sWAVE, 1), salu('s_add_u32', sT[1], sT[1], sT[2]),
          salu('s_mul_i32', sT[2], sT[1], 491520),
          valu('v_lshlrev_b32', 'v1', 4, vL),
          valu('v_add_u32', vX[0], sT[2], 'v1'), valu('v_add_u32', vX[1], 491520, vX[0])]
    P += [salu('s_lshl_b32', sT[2], sCH, 6), salu('s_add_u32', sT[2], sT[2], sT[1]), salu('s_lshl_b32', sT[2], sT[2], 2),
          salu('s_add_u32', sT[2], sT[2], sCT), salu('s_mul_i32', sT[2], sT[2], 10240), salu('s_add_u32', sT[2], sT[2], P_OFF),
          valu('v_add_u32', vPO[0], sT[2], 'v1'), valu('v_add_u32', vPO[1], 4 * 10240, vPO[0])]
    P += [scmp('s_cmp_lt_u32', sCH, 6), salu('s_cselect_b32', 's34', 's34', 's36'), salu('s_cselect_b32', 's35', 's35', 's37'),
          salu('s_cselect_b32', sT[2], 0, 384), salu('s_cselect_b32', sT[3], 4, 1), salu('s_mul_i32', sT[3], sT[3], 1536 * 1280),
          salu('s_sub_u32', sT[2], sT[0], sT[2]), salu('s_mul_i32', sT[2], sT[2], 16 * 1280),
          salu('s_mul_i32', sT[4], sCT, 320), salu('s_add_u32', sT[2], sT[2], sT[4]),
          salu('s_sub_u32', sT[3], sT[3], sT[2])]
    P += add64(34, 35, sT[2])
    P += srd(S_W, 's34', 's35', sT[3])
    P += srd(S_WS, 's40', 's41', WS_BYTES)
    P += [valu('v_bfe_u32', 'v2', vL, 2, 2),
          valu('v_and_b32', 'v3', 3, vL), valu('v_lshlrev_b32', 'v3', 4, 'v3'),
          valu('v_lshrrev_b32', 'v4', 4, vL), valu('v_lshl_add_u32', 'v5', 'v4', 6, 'v3'),
          salu('s_lshl_b32', sT[0], sWAVE, 4),
          valu('v_add_u32', 'v6', sT[0], 'v2'), valu('v_mul_u32_u24', 'v7', 1280, 'v6'), valu('v_add_u32', vD[0], 'v7', 'v5'),
          valu('v_add_u32', vD[1], 4 * 1280, vD[0]), valu('v_add_u32', vD[2], 8 * 1280, vD[0]), valu('v_add_u32', vD[3], 12 * 1280, vD[0]),
          valu('v_lshl_add_u32', 'v6', 'v4', 2, 'v6'), valu('v_mul_u32_u24', 'v7', 1280, 'v6'),
          valu('v_add_u32', 'v7', 'v7', 'v3'), valu('v_add_u32', vD[4], 256, 'v7')]
    P += [salu('s_mul_i32', sWM0, sWAVE, 5120), salu('s_mov_b32', sROW, 0), salu('s_mov_b32', sWR, 0), salu('s_mov_b32', sRD, 0)]

    def dma_stage(tag):
        g = []
        for n in range(5):
            g.append([salu('s_add_u32', sT[3], sWM0, sWR), salu('s_add_u32', 'm0', sT[3], 1024 * n), dma(vD[n], s(S_W, 4), sROW, tag=tag)])
        g.append([salu('s_add_u32', sROW, sROW, 64 * 1280),
                  salu('s_add_u32', sWR, sWR, K3_SLOT), scmp('s_cmp_ge_u32', sWR, K3_LDS), salu('s_cselect_b32', sWR, 0, sWR)])
        return g

    def fb_load(kslot, sp):
        return [buf_load(fb(kslot, b), vX[b], s(S_WS, 4), sFOFF, 1024 * sp, flags=FL_X) for b in range(2)]

    LOOK = K3_NSLOT - 2
    setup = lane_tr_part(vA0L, vL, 'v1', 'v2', 2048, 32, 64) + lane_tr_part(vA1L, vL, 'v1', 'v2', 512, 32, 64)
    setup += [valu('v_mov_b32', v(r), 0) for r in range(160)]
    q_ = len(setup) // 3
    for g in range(4):
        P += dma_stage(('S', g))
        for sp in range(4):
            P += fb_load(4 * g + sp, sp)
        P.append(salu('s_add_u32', sFOFF, sFOFF, 4096))
        if g < 3:
            P += setup[g * q_:(g + 1) * q_ if g < 2 else None]

    D = 6

    def rd(F):
        sp, t = F // 5, F % 5
        d = afr(F)
        out = []
        for q in range(2):
            if t < 4:
                out.append(ds_read('ds_read_b64_tr_b16', a(d + 2 * q, 2), vA0, sp * 5120 + q * 1024 + t * 256))
            else:
                out.append(ds_read('ds_read_b64_tr_b16', a(d + 2 * q, 2), vA1, sp * 5120 + 4096 + q * 256))
        return out

    def set_rd(first=False):
        out = []
        if not first:
            out += [salu('s_add_u32', sRD, sRD, K3_SLOT), scmp('s_cmp_ge_u32', sRD, K3_LDS), salu('s_cselect_b32', sRD, 0, sRD)]
        out += [valu('v_add_u32', vA0, sRD, vA0L), valu('v_add_u32', vA1, sRD, vA1L)]
        return out

    P += [barrier(waitjob=('S', 0))]
    P += stamp(1)
    P += set_rd(True)
    for F in range(D):
        P += rd(F)

    def stage(q4):
        M = []
        for m in range(40):
            sp, t, b = m // 10, (m % 10) // 2, m % 2
            M.append(mfma(acc(t, b), a(afr(5 * sp + t), 4), fb(4 * q4 + sp, b)))
        fill = []
        for F in range(D, 20):
            for k, ins in enumerate(rd(F)):
                fill.append((2 * (F - D) + k + 0.1, ins))
        pb = 2 * (20 - D)
        fill.append((pb - 0.5, barrier(waitjob=lambda it: ('S', 4 * it + q4 + 1))))
        for ins in set_rd():
            fill.append((pb - 0.4, ins))
        for F in range(D):
            for k, ins in enumerate(rd(F)):
                fill.append((pb + 2 * F + k + 0.1, ins))
        gs = dma_stage(lambda it: ('S', 4 * it + q4 + LOOK))
        for n, g in enumerate(gs):
            for ins in g:
                fill.append((1 + n * 4 + 0.5, ins))
        for sp in range(4):
            for ins in fb_load(4 * q4 + sp, sp):
                fill.append((10 * sp + 9.6, ins))
        fill.append((39.7, salu('s_add_u32', sFOFF, sFOFF, 4096)))
        if 'k3nob' in EXP:
            fill = [(p, i) for p, i in fill if i.kind != 'vld']
        if 'k3nodma' in EXP:
            fill = [(p, i) for p, i in fill if i.kind != 'dma' and i.kind != 'bar']
        if 'k3nomfma' in EXP:
            fill = [(p, i) for p, i in fill if i.kind != 'dsr']
            M = [valu('v_accvgpr_read_b32', 'v210', 'a%d' % min(x[1] for x in m.srcab if x[1] < 128)) for m in M]
        return interleave(M, fill)

    body = []
    for q4 in range(4):
        body += stage(q4)
    body += [salu('s_sub_u32', sCNT, sCNT, 1), scmp('s_cmp_lg_u32', sCNT, 0), raw('s_cbranch_scc1 L_k3_loop', 'br', rd=['scc'])]
    P.append(Loop('L_k3_loop', 4, body))
    P += stamp(2)
    P.append(waitcnt(vm=20))
    for k in range(3):
        P.append(salu('s_mov_b32', s(50 + k), 4096 * k))
    for t in range(5):
        for b in range(2):
            for u in range(2):
                base = 16 * (2 * t + b) + 8 * u
                dst = 160 + 4 * ((4 * t + 2 * b + u) % 8)
                for e in range(4):
                    P.append(valu('v_cvt_pk_bf16_f32', v(dst + e), v(base + 2 * e), v(base + 2 * e + 1)))
                n = 2 * t + u
                P.append(buf_store(v(dst, 4), vPO[b], s(S_WS, 4), s(50 + n // 4), 1024 * (n % 4), flags=FL_PS))
    P += stamp(3)
    if STAMP:
        P.append(I('s_memrealtime s[84:85]', 'smem', (), regs('s[84:85]')))
    P += stamp_store(5, s(S_WS, 4), sWAVE, 1 << 20, 'v210', 'v211', extra=2)
    P += rt_end(2, s(S_WS, 4), 230)
    P += [label('L_k3_end'), endpgm()]
    return kernel_text('k3_proj_kernel', P, 512, 256)


def k4():
    P = []
    P += [scmp('s_cmp_ge_u32', 's2', 640), raw('s_cbranch_scc1 L_k4_end', 'br', rd=['scc'])]
    P += rt_begin()
    P += [sload(s(4, 2), 's[0:1]', 0), sload(s(6, 2), 's[0:1]', 72), sload(s(40, 2), 's[0:1]', 88)]
    P += [valu('v_lshrrev_b32', 'v1', 6, 'v0'), valu('v_and_b32', 'v2', 63, 'v0'), readfirstlane('s24', 'v1')]
    P += [salu('s_lshl_b32', 's25', 's2', 2), salu('s_add_u32', 's25', 's25', 's24'),
          salu('s_mul_i32', 's26', 's25', 52429), salu('s_lshr_b32', 's26', 's26', 21),
          salu('s_mul_i32', 's27', 's26', 40), salu('s_sub_u32', 's27', 's25', 's27'),
          salu('s_lshl_b32', 's28', 's25', 10), salu('s_add_u32', 's28', 's28', P_OFF),
          valu('v_lshlrev_b32', 'v3', 4, 'v2'), valu('v_add_u32', 'v3', 's28', 'v3')]
    P += [salu('s_lshl_b32', 's29', 's26', 5), valu('v_and_b32', 'v4', 31, 'v2'), valu('v_add_u32', 'v4', 's29', 'v4'),
          valu('v_mul_u32_u24', 'v4', 1280, 'v4'), valu('v_lshrrev_b32', 'v5', 5, 'v2'), valu('v_lshl_add_u32', 'v4', 'v5', 4, 'v4'),
          salu('s_lshl_b32', 's29', 's27', 5), valu('v_add_u32', 'v4', 's29', 'v4')]
    P += srd(8, 's4', 's5', 2048 * 1280) + srd(12, 's6', 's7', 2048 * 1280) + srd(16, 's40', 's41', WS_BYTES)
    CH = 64 * 4 * 10240
    for c in range(8):
        P.append(salu('s_mov_b32', s(50 + c), CH * c))
    for c in range(8):
        P.append(buf_load(v(24 + 4 * c, 4), 'v3', s(16, 4), s(50 + c), flags=FL_PL))
    P.append(buf_load(v(8, 4), 'v4', s(8, 4)))
    for c in range(8):
        dstb = 16 if c < 6 else 64
        first = c in (0, 6)
        for r in range(4):
            src_ = v(24 + 4 * c + r)
            if first:
                P += [valu('v_lshlrev_b32', v(dstb + 2 * r), 16, src_), valu('v_and_b32', v(dstb + 2 * r + 1), 0xffff0000, src_)]
            else:
                P += [valu('v_lshlrev_b32', v(72 + 2 * r), 16, src_), valu('v_and_b32', v(73 + 2 * r), 0xffff0000, src_),
                      valu('v_add_f32', v(dstb + 2 * r), v(dstb + 2 * r), v(72 + 2 * r)),
                      valu('v_add_f32', v(dstb + 2 * r + 1), v(dstb + 2 * r + 1), v(73 + 2 * r))]
    for e in range(8):
        P.append(valu('v_mul_f32', v(80 + e), -LOG2E, v(64 + e)))
    for e in range(8):
        P.append(valu('v_exp_f32', v(80 + e), v(80 + e)))
    for e in range(8):
        P.append(valu('v_add_f32', v(80 + e), 1.0, v(80 + e)))
    for e in range(8):
        P.append(valu('v_rcp_f32', v(80 + e), v(80 + e)))
    for e in range(8):
        P.append(valu('v_mul_f32', v(64 + e), v(64 + e), v(80 + e)))
    for r in range(4):
        P += [valu('v_lshlrev_b32', v(88 + 2 * r), 16, v(8 + r)), valu('v_and_b32', v(89 + 2 * r), 0xffff0000, v(8 + r))]
    for e in range(8):
        P.append(valu('v_fmac_f32', v(88 + e), v(16 + e), v(64 + e)))
    for r in range(4):
        P.append(valu('v_cvt_pk_bf16_f32', v(8 + r), v(88 + 2 * r), v(89 + 2 * r)))
    P.append(buf_store(v(8, 4), 'v4', s(12, 4)))
    P += rt_end(3, s(16, 4), 80)
    P += [label('L_k4_end'), endpgm()]
    return kernel_text('k4_fin_kernel', P, 96, 96)


def main():
    hdr = open('cdna_kernels/%s.s.ref' % NAME).read().split('\n')
    com = [l for l in hdr if l.startswith(';') and '@launch' not in l and 'Override launch' not in l and 'grid=ceil' not in l]
    out = '\n'.join(com) + '\n'
    out += '; @launch kernel=k1_ln_kernel grid=(256,1,1) block=(128,1,1) lds=0\n'
    out += '; @launch kernel=k2_attn_kernel grid=(256,1,1) block=(256,1,1) lds=%d\n' % K2_LDS
    out += '; @launch kernel=k3_proj_kernel grid=(256,1,1) block=(256,1,1) lds=%d\n' % K3_LDS
    out += '; @launch kernel=k4_fin_kernel grid=(640,1,1) block=(256,1,1) lds=0\n'
    out += '.amdgcn_target "amdgcn-amd-amdhsa--gfx950"\n.text\n'
    descs = []
    for f in (k1, k2, k3, k4):
        t, d = f()
        out += t
        descs.append(d)
    out += 'CODE_END:\n  s_endpgm\n'
    out += '.section .rodata,"a"\n'
    for d in descs:
        out += '.p2align 6\n' + d
    dst = sys.argv[1] if len(sys.argv) > 1 else 'cdna_kernels/%s.s' % NAME
    open(dst, 'w').write(out)


if __name__ == '__main__':
    main()
```
